```python
import torch

def _softmax(x, axis=-1):
    return torch.softmax(x, dim=axis)
def _gelu(x):
    return torch.nn.functional.gelu(x, approximate="tanh")
def _silu(x):
    return torch.nn.functional.silu(x)
def _sigmoid(x):
    return torch.sigmoid(x)
def _layernorm(x, axis=-1, eps=1e-5):
    m = x.mean(dim=axis, keepdim=True)
    v = x.var(dim=axis, keepdim=True, unbiased=False)
    return (x - m) / torch.sqrt(v + eps)
def _scatter_add(tgt, idx, src, axis=0):
    return tgt.clone().index_add_(axis, idx, src)
def _segment_sum(src, seg, n):
    out = torch.zeros((n,) + src.shape[1:], dtype=src.dtype)
    return out.index_add_(0, seg, src)
def _pad(x, pw):
    flat = tuple(v for pair in reversed(pw) for v in pair)
    return torch.nn.functional.pad(x, flat)

kernel_name = 'standalone__swiglu_ffn__prompt'

def setup_inputs():

    _w = (lambda a: (lambda t: t.to(torch.bfloat16) if t.is_floating_point() else t)(torch.as_tensor(a)))
    B, S, D, F = 1, 2048, 512, 1376
    return {
        "x": _w((lambda *s: torch.randn(*s, dtype=torch.bfloat16) * 0.05)(B, S, D)),
        "w_gate": _w((lambda *s: torch.randn(*s, dtype=torch.bfloat16) * 0.05)(D, F)),
        "w_up": _w((lambda *s: torch.randn(*s, dtype=torch.bfloat16) * 0.05)(D, F)),
        "w_down": _w((lambda *s: torch.randn(*s, dtype=torch.bfloat16) * 0.05)(F, D)),
    }

def reference(x, w_gate, w_up, w_down):
    g = _silu(x @ w_gate)
    u = x @ w_up
    return (g * u) @ w_down
```

```python
import sys

HDR = """; Kernarg layout for this problem (56 bytes, ptrs only, base s[0:1]):
; @launch kernel=ffn_up_kernel grid=(256,1,1) block=(512,1,1) lds=163840
; @launch kernel=ffn_down_kernel grid=(256,1,1) block=(256,1,1) lds=163840
.amdgcn_target "amdgcn-amd-amdhsa--gfx950"
.text
"""

out = []
def E(s=""):
    out.append(s)

X_BYTES = 2048*1024
W_BYTES = 512*2752
WD_BYTES = 1376*1024
H_BYTES = 128*43*1024
OUT_BYTES = 2048*1024

def k1():
    E(".globl ffn_up_kernel")
    E(".p2align 8")
    E(".type ffn_up_kernel,@function")
    E("ffn_up_kernel:")
    E("  s_cmp_ge_u32 s2, 256")
    E("  s_cbranch_scc1 L1_done")
    E("  s_load_dwordx4 s[4:7], s[0:1], 0      ; x, wg")
    E("  s_load_dwordx2 s[8:9], s[0:1], 16     ; wu")
    E("  s_load_dwordx2 s[10:11], s[0:1], 48   ; ws")
    E("  s_and_b32 s12, s2, 7                  ; xcd")
    E("  s_lshr_b32 s13, s2, 3                 ; idx")
    E("  s_and_b32 s14, s12, 1")
    E("  s_lshl_b32 s14, s14, 3")
    E("  s_and_b32 s15, s13, 7")
    E("  s_add_u32 s14, s14, s15               ; mt (0..15)")
    E("  s_lshr_b32 s15, s12, 1")
    E("  s_lshl_b32 s15, s15, 2")
    E("  s_lshr_b32 s16, s13, 3")
    E("  s_add_u32 s15, s15, s16               ; nt (0..15)")
    E("  s_cmp_ge_u32 s15, 15")
    E("  s_cbranch_scc1 L1_done")
    E("  v_lshrrev_b32 v1, 6, v0")
    E("  v_and_b32 v2, 63, v0                  ; lane")
    E("  v_readfirstlane_b32 s17, v1")
    E("  v_lshrrev_b32 v3, 3, v2               ; lane>>3")
    E("  v_lshrrev_b32 v4, 4, v2               ; g = lane>>4")
    E("  v_and_b32 v5, 7, v2                   ; lane&7")
    E("  s_lshl_b32 s18, s14, 7                ; mt*128")
    E("  s_lshl_b32 s19, s17, 4                ; 16w")
    E("  s_add_u32 s18, s18, s19               ; mt*128+16w")
    E("  v_add_u32 v6, s18, v3")
    E("  v_lshlrev_b32 v6, 10, v6              ; *1024")
    E("  v_xor_b32 v7, v5, v4                  ; j (i=0)")
    E("  v_lshl_add_u32 v10, v7, 4, v6         ; voff x0")
    E("  v_xor_b32 v7, 4, v7                   ; j (i=1)")
    E("  v_lshl_add_u32 v11, v7, 4, v6")
    E("  v_add_u32 v11, 7168, v11")
    E("  s_and_b32 s19, s17, 3                 ; w&3")
    E("  s_mul_i32 s19, s19, 192               ; 3*64*(w&3)")
    E("  s_mul_i32 s20, s15, 192")
    for i in range(3):
        E(f"  v_add_u32 v6, s19, v2")
        if i:
            E(f"  v_add_u32 v6, {64*i}, v6              ; U")
        E(f"  v_mul_u32_u24 v7, 0xaaab, v6")
        E(f"  v_lshrrev_b32 v7, 19, v7              ; q = U/12")
        E(f"  v_mul_u32_u24 v8, 12, v7")
        E(f"  v_sub_u32 v8, v6, v8                  ; j' = U%12")
        E(f"  v_and_b32 v9, 4, v7                   ; q&4")
        E(f"  v_lshrrev_b32 v15, 1, v9              ; 2*bit2(q)")
        E(f"  v_xor_b32 v8, v8, v15                 ; j")
        E(f"  v_lshlrev_b32 v9, 1, v9               ; (q&4)<<1")
        E(f"  v_and_b32 v15, 8, v7")
        E(f"  v_lshrrev_b32 v15, 1, v15             ; (q&8)>>1")
        E(f"  v_and_b32 v7, 0x33, v7")
        E(f"  v_or3_b32 v7, v7, v9, v15             ; k")
        E(f"  v_mul_u32_u24 v7, 2752, v7")
        E(f"  v_lshl_add_u32 v7, v8, 4, v7")
        E(f"  v_add_u32 v{12+i}, s20, v7")
        if i:
            E(f"  v_subrev_u32 v{12+i}, {1024*i}, v{12+i}")
    E("  s_lshr_b32 s21, s17, 1                ; wm")
    E("  s_and_b32 s22, s17, 1                 ; wn")
    E("  v_and_b32 v6, 15, v2")
    E("  v_lshlrev_b32 v6, 7, v6               ; (l&15)*128")
    E("  s_lshl_b32 s23, s21, 12               ; wm*4096")
    E("  v_add_u32 v6, s23, v6")
    E("  v_bfe_u32 v7, v2, 1, 3                ; (l>>1)&7")
    E("  v_xor_b32 v7, v7, v4")
    E("  v_lshl_add_u32 v16, v7, 4, v6         ; xa0")
    E("  v_xor_b32 v17, 64, v16                ; xa1")
    E("  v_bfe_u32 v6, v2, 2, 2                ; r")
    E("  v_bfe_u32 v7, v2, 4, 1                ; g&1")
    E("  v_lshl_add_u32 v6, v7, 2, v6          ; r+4(g&1)")
    E("  v_lshrrev_b32 v8, 5, v2               ; g>>1")
    E("  v_lshl_add_u32 v6, v8, 4, v6")
    E("  v_mul_u32_u24 v6, 192, v6")
    E("  v_xor_b32 v7, s22, v7                 ; wn^(g&1)")
    E("  v_lshl_add_u32 v6, v7, 5, v6")
    E("  v_and_b32 v8, 3, v2")
    E("  v_lshl_add_u32 v6, v8, 3, v6")
    E("  v_add_u32 v18, 16384, v6              ; wa")
    E("  s_lshl_b32 s36, s17, 11               ; 2048w")
    E("  s_mul_i32 s37, s17, 3072")
    E("  s_add_u32 s37, s37, 16384             ; W m0 base")
    E("  s_waitcnt lgkmcnt(0)")
    E("  s_mov_b32 s24, s4")
    E("  s_and_b32 s25, s5, 0xffff")
    E(f"  s_mov_b32 s26, {X_BYTES}")
    E("  s_mov_b32 s27, 0x20000")
    E("  s_cmp_lt_u32 s17, 4")
    E("  s_cselect_b32 s28, s6, s8")
    E("  s_cselect_b32 s29, s7, s9")
    E("  s_and_b32 s29, s29, 0xffff")
    E(f"  s_mov_b32 s30, {W_BYTES}")
    E("  s_mov_b32 s31, 0x20000")
    E("  s_mov_b32 s32, s10")
    E("  s_and_b32 s33, s11, 0xffff")
    E(f"  s_mov_b32 s34, {H_BYTES}")
    E("  s_mov_b32 s35, 0x20000")

    def issue(slot_s, sx, sw):
        if isinstance(slot_s, int):
            if slot_s == 0:
                E("  s_mov_b32 m0, s36")
            else:
                E(f"  s_add_u32 m0, s36, {slot_s}")
        else:
            E(f"  s_add_u32 m0, s36, {slot_s}")
        E("  s_nop 0")
        E(f"  buffer_load_dwordx4 v10, s[24:27], {sx} offen lds")
        E(f"  buffer_load_dwordx4 v11, s[24:27], {sx} offen offset:1024 lds")
        if isinstance(slot_s, int):
            if slot_s == 0:
                E("  s_mov_b32 m0, s37")
            else:
                E(f"  s_add_u32 m0, s37, {slot_s}")
        else:
            E(f"  s_add_u32 m0, s37, {slot_s}")
        E("  s_nop 0")
        E(f"  buffer_load_dwordx4 v12, s[28:31], {sw} offen lds")
        E(f"  buffer_load_dwordx4 v13, s[28:31], {sw} offen offset:1024 lds")
        E(f"  buffer_load_dwordx4 v14, s[28:31], {sw} offen offset:2048 lds")

    issue(0, "0", "0")
    E("  s_mov_b32 s38, 128")
    E("  s_mov_b32 s39, 176128")
    issue(40960, "s38", "s39")
    E("  s_mov_b32 s38, 256")
    E("  s_mov_b32 s39, 352256")
    issue(81920, "s38", "s39")
    for r in range(96, 144):
        E(f"  v_mov_b32 v{r}, 0")

    P, Q = 32, 64
    def reads(B, ks, xa, wa):
        for mb in range(2):
            E(f"  ds_read_b128 v[{B+4*mb}:{B+4*mb+3}], v{xa} offset:{mb*2048}")
        for gu in range(2):
            for i in range(3):
                for jj in range(2):
                    r = B + 8 + gu*12 + i*4 + jj*2
                    off = i*64 + jj*1536 + ks*6144 + gu*12288
                    E(f"  ds_read_b64_tr_b16 v[{r}:{r+1}], v{wa} offset:{off}")
    def mfmas(B):
        for gu in range(2):
            for i in range(3):
                for mb in range(2):
                    a = B + 8 + gu*12 + i*4
                    b = B + 4*mb
                    c = 96 + gu*24 + (mb*3+i)*4
                    E(f"  v_mfma_f32_16x16x32_bf16 v[{c}:{c+3}], v[{a}:{a+3}], v[{b}:{b+3}], v[{c}:{c+3}]")

    E("  s_waitcnt vmcnt(10)")
    E("  s_barrier")
    reads(P, 0, 16, 18)
    reads(Q, 1, 17, 18)
    E("  s_waitcnt lgkmcnt(14)")
    mfmas(P)
    E("  s_mov_b32 s40, 0                      ; i")
    E("  s_mov_b32 s41, 40960")
    E("  s_mov_b32 s42, 122880")
    E("  s_mov_b32 s38, 384")
    E("  s_mov_b32 s39, 528384")
    E("L1_loop:")
    E("  s_cmp_eq_u32 s40, 6")
    E("  s_cbranch_scc1 L1_w0")
    E("  s_waitcnt vmcnt(5)")
    E("  s_branch L1_w1")
    E("L1_w0:")
    E("  s_waitcnt vmcnt(0)")
    E("L1_w1:")
    E("  s_barrier")
    E("  s_cmp_gt_u32 s40, 4")
    E("  s_cbranch_scc1 L1_noissue")
    issue("s42", "s38", "s39")
    E("  s_add_u32 s38, s38, 128")
    E("  s_add_u32 s39, s39, 176128")
    E("  s_add_u32 s42, s42, 40960")
    E("  s_cmp_eq_u32 s42, 163840")
    E("  s_cselect_b32 s42, 0, s42")
    E("L1_noissue:")
    E("  v_add_u32 v19, s41, v16")
    E("  v_add_u32 v20, s41, v17")
    E("  v_add_u32 v21, s41, v18")
    reads(P, 0, 19, 21)
    E("  s_waitcnt lgkmcnt(14)")
    mfmas(Q)
    reads(Q, 1, 20, 21)
    E("  s_waitcnt lgkmcnt(14)")
    mfmas(P)
    E("  s_add_u32 s41, s41, 40960")
    E("  s_cmp_eq_u32 s41, 163840")
    E("  s_cselect_b32 s41, 0, s41")
    E("  s_add_u32 s40, s40, 1")
    E("  s_cmp_lt_u32 s40, 7")
    E("  s_cbranch_scc1 L1_loop")
    E("  s_waitcnt lgkmcnt(0)")
    mfmas(Q)
    E("  s_lshl_b32 s43, s14, 3")
    E("  s_lshl_b32 s44, s21, 1")
    E("  s_add_u32 s43, s43, s44")
    E("  s_mul_i32 s43, s43, 43")
    E("  s_mul_i32 s44, s15, 3")
    E("  s_add_u32 s43, s43, s44")
    E("  s_lshl_b32 s43, s43, 10")
    E("  s_lshl_b32 s44, s22, 3")
    E("  v_lshlrev_b32 v22, 4, v2")
    E("  v_add_u32 v22, s44, v22")
    E("  s_mov_b32 s46, 0xbfb8aa3b             ; -log2(e)")
    E("  s_mov_b32 s47, 0xbfb8aa3b")
    E("  s_mov_b32 s48, 1.0")
    E("  s_mov_b32 s49, 1.0")
    E("  s_nop 7")
    E("  s_nop 7")
    for i in range(3):
        if i == 1:
            E("  s_cmp_eq_u32 s15, 14")
            E("  s_cbranch_scc1 L1_done")
        for mb in range(2):
            g = 96 + (mb*3+i)*4
            u = 120 + (mb*3+i)*4
            t = 32 + (i*2+mb)*8
            E(f"  v_pk_mul_f32 v[{t}:{t+1}], v[{g}:{g+1}], s[46:47]")
            E(f"  v_pk_mul_f32 v[{t+2}:{t+3}], v[{g+2}:{g+3}], s[46:47]")
            for e in range(4):
                E(f"  v_exp_f32 v{t+e}, v{t+e}")
            E(f"  v_pk_mul_f32 v[{t+4}:{t+5}], v[{g}:{g+1}], v[{u}:{u+1}]")
            E(f"  v_pk_mul_f32 v[{t+6}:{t+7}], v[{g+2}:{g+3}], v[{u+2}:{u+3}]")
            E(f"  v_pk_add_f32 v[{t}:{t+1}], v[{t}:{t+1}], s[48:49]")
            E(f"  v_pk_add_f32 v[{t+2}:{t+3}], v[{t+2}:{t+3}], s[48:49]")
            for e in range(4):
                E(f"  v_rcp_f32 v{t+e}, v{t+e}")
            E("  s_nop 0")
            E(f"  v_pk_mul_f32 v[{t+4}:{t+5}], v[{t+4}:{t+5}], v[{t}:{t+1}]")
            E(f"  v_pk_mul_f32 v[{t+6}:{t+7}], v[{t+6}:{t+7}], v[{t+2}:{t+3}]")
            E(f"  v_cvt_pk_bf16_f32 v{t}, v{t+4}, v{t+5}")
            E(f"  v_cvt_pk_bf16_f32 v{t+1}, v{t+6}, v{t+7}")
            so = (mb*43 + i)*1024
            if so:
                E(f"  s_add_u32 s45, s43, {so}")
                E(f"  buffer_store_dwordx2 v[{t}:{t+1}], v22, s[32:35], s45 offen")
            else:
                E(f"  buffer_store_dwordx2 v[{t}:{t+1}], v22, s[32:35], s43 offen")
    E("L1_done:")
    E("  s_endpgm")

def k2():
    E(".globl ffn_down_kernel")
    E(".p2align 8")
    E(".type ffn_down_kernel,@function")
    E("ffn_down_kernel:")
    E("  s_cmp_ge_u32 s2, 256")
    E("  s_cbranch_scc1 L2_done")
    E("  s_load_dwordx4 s[4:7], s[0:1], 24")
    E("  s_load_dwordx2 s[10:11], s[0:1], 48   ; ws")
    E("  s_and_b32 s12, s2, 7                  ; xcd")
    E("  s_lshr_b32 s13, s2, 3                 ; idx")
    E("  s_lshl_b32 s14, s12, 2")
    E("  s_and_b32 s15, s13, 3")
    E("  s_add_u32 s14, s14, s15               ; mt (0..31)")
    E("  s_lshr_b32 s15, s13, 2                ; nt (0..7)")
    E("  v_lshrrev_b32 v1, 6, v0")
    E("  v_and_b32 v2, 63, v0                  ; lane")
    E("  v_readfirstlane_b32 s17, v1")
    E("  v_lshlrev_b32 v10, 4, v2")
    for mb in range(1, 4):
        E(f"  v_add_u32 v{10+mb}, {mb*43008}, v10")
    E("  v_lshrrev_b32 v3, 3, v2")
    E("  v_lshlrev_b32 v3, 10, v3")
    E("  v_lshrrev_b32 v4, 4, v2               ; g")
    E("  v_lshlrev_b32 v5, 1, v4")
    E("  v_and_b32 v6, 7, v2")
    E("  v_xor_b32 v5, v5, v6")
    E("  v_lshl_add_u32 v3, v5, 4, v3")
    E("  s_lshl_b32 s18, s15, 7")
    E("  v_add_u32 v14, s18, v3")
    for e in range(1, 4):
        E(f"  v_add_u32 v{14+e}, {e*7168}, v14")
    E("  s_mul_i32 s19, s17, 40960")
    E("  v_add_u32 v18, s19, v10")
    E("  v_lshrrev_b32 v5, 2, v2")
    E("  v_lshlrev_b32 v5, 7, v5")
    E("  v_and_b32 v6, 3, v2")
    E("  v_lshl_add_u32 v5, v6, 3, v5")
    E("  v_add_u32 v5, s19, v5")
    E("  v_add_u32 v5, 4096, v5")
    E("  v_bfe_u32 v6, v2, 3, 2                ; y")
    for cb in range(4):
        E(f"  v_xor_b32 v7, {cb}, v6")
        E(f"  v_lshl_add_u32 v{19+cb}, v7, 5, v5")
    E("  s_mul_i32 s20, s14, 176128            ; mt*4*44032")
    E("  s_lshl_b32 s21, s17, 10")
    E("  s_add_u32 s20, s20, s21")
    E("  s_lshl_b32 s21, s17, 15")
    E("  s_cmp_eq_u32 s17, 3")
    E("  s_cselect_b32 s22, 10, 11             ; T")
    E("  s_waitcnt lgkmcnt(0)")
    E("  s_mov_b32 s24, s10")
    E("  s_and_b32 s25, s11, 0xffff")
    E(f"  s_mov_b32 s26, {H_BYTES}")
    E("  s_mov_b32 s27, 0x20000")
    E("  s_mov_b32 s28, s4")
    E("  s_and_b32 s29, s5, 0xffff")
    E(f"  s_mov_b32 s30, {WD_BYTES}")
    E("  s_mov_b32 s31, 0x20000")
    E("  s_mov_b32 s32, s6")
    E("  s_and_b32 s33, s7, 0xffff")
    E(f"  s_mov_b32 s34, {OUT_BYTES}")
    E("  s_mov_b32 s35, 0x20000")

    def issue(m0reg):
        E(f"  s_mov_b32 m0, {m0reg}")
        E("  s_nop 0")
        for mb in range(4):
            E(f"  buffer_load_dwordx4 v{10+mb}, s[24:27], s20 offen offset:{mb*1024} lds")
        E(f"  s_add_u32 m0, {m0reg}, 4096")
        E("  s_add_u32 s20, s20, 4096")
        for e in range(4):
            E(f"  buffer_load_dwordx4 v{14+e}, s[28:31], s21 offen offset:{e*1024} lds")
        E("  s_add_u32 s21, s21, 131072")

    E("  s_mov_b32 s23, s19")
    E("  s_mov_b32 s36, 0")
    E("L2_pro:")
    issue("s23")
    E("  s_add_u32 s23, s23, 8192")
    E("  s_add_u32 s36, s36, 1")
    E("  s_cmp_lt_u32 s36, 5")
    E("  s_cbranch_scc1 L2_pro")
    for r in range(64, 128):
        E(f"  v_mov_b32 v{r}, 0")
    E("  s_mov_b32 s36, 0                      ; t")
    E("  s_mov_b32 s37, 0")
    E("L2_loop:")
    E("  s_sub_u32 s38, s22, s36               ; remaining (>=1)")
    E("  s_cmp_ge_u32 s38, 5")
    E("  s_cbranch_scc1 L2_w32")
    E("  s_cmp_eq_u32 s38, 4")
    E("  s_cbranch_scc1 L2_w24")
    E("  s_cmp_eq_u32 s38, 3")
    E("  s_cbranch_scc1 L2_w16")
    E("  s_cmp_eq_u32 s38, 2")
    E("  s_cbranch_scc1 L2_w8")
    E("  s_waitcnt vmcnt(0)")
    E("  s_branch L2_wd")
    E("L2_w8:")
    E("  s_waitcnt vmcnt(8)")
    E("  s_branch L2_wd")
    E("L2_w16:")
    E("  s_waitcnt vmcnt(16)")
    E("  s_branch L2_wd")
    E("L2_w24:")
    E("  s_waitcnt vmcnt(24)")
    E("  s_branch L2_wd")
    E("L2_w32:")
    E("  s_waitcnt vmcnt(32)")
    E("L2_wd:")
    E("  v_add_u32 v23, s37, v18")
    for cb in range(4):
        E(f"  v_add_u32 v{24+cb}, s37, v{19+cb}")
    for mb in range(4):
        E(f"  ds_read_b128 v[{32+4*mb}:{35+4*mb}], v23 offset:{mb*1024}")
    for cb in range(4):
        for jj in range(2):
            r = 48 + cb*4 + jj*2
            E(f"  ds_read_b64_tr_b16 v[{r}:{r+1}], v{24+cb} offset:{jj*2048}")
    E("  s_waitcnt lgkmcnt(0)")
    E("  s_cmp_le_u32 s38, 5")
    E("  s_cbranch_scc1 L2_noissue")
    E("  s_add_u32 s23, s19, s37")
    issue("s23")
    E("L2_noissue:")
    for cb in range(4):
        for mb in range(4):
            c = 64 + (mb*4+cb)*4
            a = 48 + cb*4
            b = 32 + mb*4
            E(f"  v_mfma_f32_16x16x32_bf16 v[{c}:{c+3}], v[{a}:{a+3}], v[{b}:{b+3}], v[{c}:{c+3}]")
    E("  s_add_u32 s37, s37, 8192")
    E("  s_cmp_eq_u32 s37, 40960")
    E("  s_cselect_b32 s37, 0, s37")
    E("  s_add_u32 s36, s36, 1")
    E("  s_cmp_lt_u32 s36, s22")
    E("  s_cbranch_scc1 L2_loop")
    E("  s_nop 7")
    E("  s_nop 7")
    for t in range(16):
        c = 64 + t*4
        E(f"  ds_write_b128 v18, v[{c}:{c+3}] offset:{t*1024}")
    E("  s_waitcnt lgkmcnt(0)")
    E("  s_barrier")
    E("  s_lshl_b32 s38, s17, 12               ; w*4096")
    E("  v_add_u32 v23, s38, v10               ; lane*16 + w*4096")
    E("  v_add_u32 v24, 81920, v23")
    for ww in range(4):
        for cb in range(4):
            r = 64 + (ww*4+cb)*4
            base = 23 if ww < 2 else 24
            off = (ww & 1)*40960 + cb*1024
            E(f"  ds_read_b128 v[{r}:{r+3}], v{base} offset:{off}")
    E("  s_lshl_b32 s38, s14, 6")
    E("  s_lshl_b32 s39, s17, 4")
    E("  s_add_u32 s38, s38, s39")
    E("  v_and_b32 v5, 15, v2")
    E("  v_add_u32 v5, s38, v5")
    E("  v_lshlrev_b32 v5, 10, v5")
    E("  v_add_u32 v5, s18, v5")
    E("  v_and_b32 v6, 1, v4")
    E("  v_lshl_add_u32 v5, v6, 5, v5")
    E("  v_lshrrev_b32 v6, 1, v4")
    E("  v_lshl_add_u32 v5, v6, 4, v5")
    E("  s_waitcnt lgkmcnt(0)")
    for cb in range(4):
        for h in range(2):
            r0 = 64 + cb*4 + h*2
            E(f"  v_pk_add_f32 v[{r0}:{r0+1}], v[{r0}:{r0+1}], v[{r0+16}:{r0+17}]")
            E(f"  v_pk_add_f32 v[{r0+32}:{r0+33}], v[{r0+32}:{r0+33}], v[{r0+48}:{r0+49}]")
            E(f"  v_pk_add_f32 v[{r0}:{r0+1}], v[{r0}:{r0+1}], v[{r0+32}:{r0+33}]")
    for p in range(2):
        for h in range(2):
            cb = 2*p + h
            r0 = 64 + cb*4
            E(f"  v_cvt_pk_bf16_f32 v{32+4*p+2*h}, v{r0}, v{r0+1}")
            E(f"  v_cvt_pk_bf16_f32 v{33+4*p+2*h}, v{r0+2}, v{r0+3}")
    E("  s_nop 1")
    for p in range(2):
        E(f"  v_permlane16_swap_b32 v{32+4*p}, v{34+4*p}")
        E(f"  v_permlane16_swap_b32 v{33+4*p}, v{35+4*p}")
    for p in range(2):
        E(f"  buffer_store_dwordx4 v[{32+4*p}:{35+4*p}], v5, s[32:35], 0 offen offset:{p*64}")
    E("L2_done:")
    E("  s_endpgm")

def kd(name, vg, sg):
    E(f".amdhsa_kernel {name}")
    E(f"  .amdhsa_next_free_vgpr {vg}")
    E(f"  .amdhsa_next_free_sgpr {sg}")
    E(f"  .amdhsa_accum_offset {(vg+3)//4*4}")
    E("  .amdhsa_group_segment_fixed_size 0")
    E("  .amdhsa_kernarg_size 56")
    E("  .amdhsa_user_sgpr_count 2")
    E("  .amdhsa_user_sgpr_kernarg_segment_ptr 1")
    E("  .amdhsa_system_sgpr_workgroup_id_x 1")
    E(".end_amdhsa_kernel")

k1()
k2()
E('.section .rodata,"a"')
E(".p2align 6")
kd("ffn_up_kernel", 144, 64)
E(".p2align 6")
kd("ffn_down_kernel", 128, 64)
path = sys.argv[1] if len(sys.argv) > 1 else "standalone__swiglu_ffn__prompt.s"
open(path, "w").write(HDR + "\n".join(out) + "\n")
```

```python
import sys, os

HDR = """; Kernarg layout for this problem (56 bytes, ptrs only, base s[0:1]):
; @launch grid=(256,1,1) block=(512,1,1) lds=163840
.amdgcn_target "amdgcn-amd-amdhsa--gfx950"
.text
"""
STAMP = int(os.environ.get("STAMP", "0"))
NOROT = int(os.environ.get("NOROT", "0"))
FULLROT = int(os.environ.get("FULLROT", "0"))
out = []
def E(s=""):
    out.append(s)
NST = [0]
def stamp():
    if STAMP:
        n = NST[0]; NST[0] += 1
        E(f"  s_memrealtime s[{70+2*n}:{71+2*n}]")
        if n == 0:
            E("  s_memtime s[96:97]")
def stamp_flush():
    if not STAMP: return
    n = NST[0]
    E("  s_waitcnt vmcnt(0) lgkmcnt(0)")
    E(f"  s_memrealtime s[{70+2*n}:{71+2*n}]")
    E("  s_memtime s[98:99]")
    E("  s_waitcnt lgkmcnt(0)")
    E("  s_sub_u32 s98, s98, s96")
    E("  s_cmp_lg_u32 s44, 0")
    E(f"  s_cbranch_scc1 Lst_skip")
    E("  s_lshl_b32 s58, s2, 7")
    E("  s_add_u32 s58, s58, 0x800000")
    E("  v_mov_b32 v1, s58")
    E("  s_mov_b64 exec, 1")
    for i in range(n+1):
        E(f"  v_mov_b32 v2, s{70+2*i}")
        E(f"  v_mov_b32 v3, s{71+2*i}")
        E(f"  global_store_dwordx2 v1, v[2:3], s[16:17] offset:{8*i}")
        E("  s_nop 1")
    E("  v_mov_b32 v2, s98")
    E("  v_mov_b32 v3, 0")
    E("  global_store_dwordx2 v1, v[2:3], s[16:17] offset:120")
    E(f"Lst_skip:")

X_BYTES = 2048*1024
W_BYTES = 512*2752
WD_BYTES = 1376*1024
WS_BYTES = 8 << 20
FLAG_OFF = 6 << 20
OUT_BYTES = 2048*1024
OOB = 0x40000000

def interleave(mf, others, pattern):
    oi = 0
    for i, m in enumerate(mf):
        E(m)
        n = pattern[i] if i < len(pattern) else 0
        for _ in range(n):
            if oi < len(others):
                for l in others[oi]: E(l)
                oi += 1
    while oi < len(others):
        for l in others[oi]: E(l)
        oi += 1

def srd(d, lo, hi, nbytes):
    E(f"  s_mov_b32 s{d}, s{lo}")
    E(f"  s_and_b32 s{d+1}, s{hi}, 0xffff")
    E(f"  s_mov_b32 s{d+2}, {nbytes}")
    E(f"  s_mov_b32 s{d+3}, 0x20000")

K = "standalone__swiglu_ffn__prompt_kernel"
E(f".globl {K}")
E(".p2align 8")
E(f".type {K},@function")
E(f"{K}:")
E("  s_cmp_ge_u32 s2, 256")
E("  s_cbranch_scc1 L_done")
stamp()
E("  s_load_dwordx8 s[4:11], s[0:1], 0")
E("  s_load_dwordx4 s[12:15], s[0:1], 32")
E("  s_load_dwordx2 s[16:17], s[0:1], 48   ; ws")
E("  s_and_b32 s50, s2, 7")
E("  s_lshr_b32 s51, s2, 3                 ; idx")
E("  s_and_b32 s45, s50, 1")
E("  s_lshl_b32 s45, s45, 3")
E("  s_and_b32 s52, s51, 7")
E("  s_add_u32 s45, s45, s52               ; mt (0..15)")
E("  s_lshr_b32 s46, s50, 1")
E("  s_lshl_b32 s46, s46, 2")
E("  s_lshr_b32 s52, s51, 3")
E("  s_add_u32 s46, s46, s52               ; nt (0..15)")
E("  s_lshl_b32 s47, s50, 2")
E("  s_and_b32 s52, s51, 3")
E("  s_add_u32 s47, s47, s52               ; mt2 (0..31)")
E("  s_lshr_b32 s48, s51, 2                ; nt2 (0..7)")
E("  v_lshrrev_b32 v1, 6, v0")
E("  v_and_b32 v2, 63, v0                  ; lane")
E("  v_readfirstlane_b32 s44, v1")
E("  s_lshl_b32 s52, s2, 3")
E("  s_add_u32 s52, s52, s44")
E("  s_mul_i32 s52, s52, 768")
E("  v_lshlrev_b32 v9, 7, v2")
E("  v_add_u32 v9, s52, v9")
E("  v_cmp_gt_u32 vcc, 6, v2")
E("  v_mov_b32 v8, 0x40000000")
E("  v_lshrrev_b32 v3, 3, v2               ; lane>>3")
E("  v_cndmask_b32 v9, v8, v9, vcc")
E("  v_lshrrev_b32 v4, 4, v2               ; g = lane>>4")
E("  v_and_b32 v5, 7, v2                   ; lane&7")
E("  s_lshl_b32 s52, s45, 7                ; mt*128")
E("  s_lshl_b32 s53, s44, 4                ; 16w")
E("  s_add_u32 s52, s52, s53")
E("  v_add_u32 v6, s52, v3")
E("  v_lshlrev_b32 v6, 10, v6")
E("  v_xor_b32 v7, v5, v4                  ; j (i=0)")
E("  v_lshl_add_u32 v10, v7, 4, v6         ; voff x0")
E("  v_xor_b32 v7, 4, v7")
E("  v_lshl_add_u32 v11, v7, 4, v6")
E("  v_add_u32 v11, 7168, v11")
E("  s_and_b32 s53, s44, 3")
E("  s_mul_i32 s53, s53, 192")
E("  s_mul_i32 s54, s46, 192")
for i in range(3):
    E(f"  v_add_u32 v6, s53, v2")
    if i:
        E(f"  v_add_u32 v6, {64*i}, v6")
    E(f"  v_mul_u32_u24 v7, 0xaaab, v6")
    E(f"  v_lshrrev_b32 v7, 19, v7              ; q = U/12")
    E(f"  v_mul_u32_u24 v8, 12, v7")
    E(f"  v_sub_u32 v8, v6, v8                  ; j' = U%12")
    E(f"  v_and_b32 v19, 4, v7")
    E(f"  v_lshrrev_b32 v15, 1, v19")
    E(f"  v_xor_b32 v8, v8, v15                 ; j")
    E(f"  v_lshlrev_b32 v19, 1, v19")
    E(f"  v_and_b32 v15, 8, v7")
    E(f"  v_lshrrev_b32 v15, 1, v15")
    E(f"  v_and_b32 v7, 0x33, v7")
    E(f"  v_or3_b32 v7, v7, v19, v15            ; k")
    E(f"  v_mul_u32_u24 v7, 2752, v7")
    E(f"  v_lshl_add_u32 v7, v8, 4, v7")
    E(f"  v_add_u32 v{12+i}, s54, v7")
    if i:
        E(f"  v_subrev_u32 v{12+i}, {1024*i}, v{12+i}")
E("  s_and_b32 s55, s46, 3")
E("  s_lshl_b32 s55, s55, 1")
E("  s_and_b32 s52, s45, 7")
E("  s_add_u32 s55, s55, s52")
E("  s_sub_u32 s52, s55, 7")
E("  s_cmp_ge_u32 s55, 7")
E("  s_cselect_b32 s55, s52, s55")
if NOROT:
    E("  s_mov_b32 s55, 0")
E("  s_lshl_b32 s56, s44, 11               ; x m0 base 2048w")
E("  s_mul_i32 s57, s44, 3072")
E("  s_add_u32 s57, s57, 16384             ; W m0 base")
E("  s_waitcnt lgkmcnt(0)")
srd(20, 4, 5, X_BYTES)
E("  s_cmp_lt_u32 s44, 4")
E("  s_cselect_b32 s24, s6, s8")
E("  s_cselect_b32 s25, s7, s9")
E("  s_and_b32 s25, s25, 0xffff")
E(f"  s_mov_b32 s26, {W_BYTES}")
E("  s_mov_b32 s27, 0x20000")
srd(28, 10, 11, WD_BYTES)
E("  buffer_load_dword v31, v9, s[28:31], 0 offen")
E("  s_cmp_ge_u32 s46, 15")
E("  s_cbranch_scc1 L_skip_issue0")

def issue_list(slot, sx, sw):
    g = []
    g.append([f"  s_add_u32 m0, s56, {slot}", "  s_nop 0", f"  buffer_load_dwordx4 v10, s[20:23], {sx} offen lds"])
    g.append([f"  buffer_load_dwordx4 v11, s[20:23], {sx} offen offset:1024 lds"])
    g.append([f"  s_add_u32 m0, s57, {slot}", "  s_nop 0", f"  buffer_load_dwordx4 v12, s[24:27], {sw} offen lds"])
    g.append([f"  buffer_load_dwordx4 v13, s[24:27], {sw} offen offset:1024 lds"])
    g.append([f"  buffer_load_dwordx4 v14, s[24:27], {sw} offen offset:2048 lds"])
    return g
def next_soff():
    return ["  s_lshl_b32 s58, s55, 7",
            "  s_add_u32 s58, s58, 128",
            "  s_mul_i32 s59, s55, 176128",
            "  s_add_u32 s59, s59, 176128",
            "  s_add_u32 s55, s55, 1",
            "  s_cmp_eq_u32 s55, 7",
            "  s_cselect_b32 s55, 0, s55"]
for g in issue_list(0, "0", "0"):
    for l in g: E(l)
for st in (1, 2):
    for l in next_soff(): E(l)
    for g in issue_list(st*40960, "s58", "s59"):
        for l in g: E(l)
E("L_skip_issue0:")
srd(32, 16, 17, WS_BYTES)
srd(36, 12, 13, OUT_BYTES)
srd(40, 14, 15, 256)
E("  s_add_u32 s52, s2, s44")
E("  s_cmp_lg_u32 s52, 0")
E("  s_cbranch_scc1 L_notok")
E("  s_memrealtime s[52:53]")
E("  v_mov_b32 v1, 0")
E("  s_waitcnt lgkmcnt(0)")
E("  s_or_b32 s52, s52, 1")
E("  v_mov_b32 v8, s52")
E("  s_mov_b64 exec, 1")
E("  buffer_store_dword v8, v1, s[40:43], 0 offen sc1")
E("  s_mov_b64 exec, -1")
E("L_notok:")
E("  v_lshlrev_b32 v6, 10, v3              ; (lane>>3)*1024")
E("  v_lshlrev_b32 v7, 1, v4")
E("  v_xor_b32 v7, v7, v5")
E("  v_lshl_add_u32 v6, v7, 4, v6")
E("  s_lshl_b32 s49, s48, 7                ; nt2*128")
E("  v_add_u32 v15, s49, v6")
E("  s_mul_i32 s52, s44, 5")
E("  s_lshl_b32 s65, s52, 10")
for j in range(5):
    E(f"  s_add_u32 s53, s52, {j}")
    E("  s_lshr_b32 s54, s53, 2")
    E("  s_lshl_b32 s54, s54, 17")
    E("  s_and_b32 s53, s53, 3")
    E("  s_lshl_b32 s53, s53, 13")
    E(f"  s_add_u32 s{60+j}, s53, s54")
def wd_issue(kg):
    g = []
    for j in range(5):
        g.append([f"  s_add_u32 m0, s65, {kg*40960 + j*1024}",
                  f"  s_add_u32 s58, s{60+j}, {kg*32768}",
                  "  buffer_load_dwordx4 v15, s[28:31], s58 offen lds"])
    return g
E("  s_cmp_ge_u32 s46, 15")
E("  s_cbranch_scc1 L_idle1")
E("  s_lshr_b32 s66, s44, 1                ; wm")
E("  s_and_b32 s67, s44, 1                 ; wn")
E("  v_and_b32 v6, 15, v2")
E("  v_lshlrev_b32 v6, 7, v6")
E("  s_lshl_b32 s52, s66, 12")
E("  v_add_u32 v6, s52, v6")
E("  v_bfe_u32 v7, v2, 1, 3")
E("  v_xor_b32 v7, v7, v4")
E("  v_lshl_add_u32 v16, v7, 4, v6         ; xa0")
E("  v_xor_b32 v17, 64, v16                ; xa1")
E("  v_add_u32 v18, 81920, v16")
E("  v_add_u32 v19, 81920, v17")
E("  v_bfe_u32 v6, v2, 2, 2                ; r")
E("  v_bfe_u32 v7, v2, 4, 1                ; g&1")
E("  v_lshl_add_u32 v6, v7, 2, v6")
E("  v_lshrrev_b32 v8, 5, v2")
E("  v_lshl_add_u32 v6, v8, 4, v6")
E("  v_mul_u32_u24 v6, 192, v6")
E("  v_and_b32 v8, 3, v2")
E("  v_lshl_add_u32 v6, v8, 3, v6")
E("  v_add_u32 v6, 16384, v6               ; lanepart")
E("  v_lshl_add_u32 v20, v7, 5, v6         ; E = lanepart + (g&1)*32")
E("  v_xor_b32 v7, 1, v7")
E("  v_lshl_add_u32 v21, v7, 5, v6         ; O")
E("  s_cmp_eq_u32 s67, 1")
E("  s_cselect_b64 vcc, -1, 0")
E("  s_lshl_b32 s52, s67, 7")
E("  v_cndmask_b32 v22, v20, v21, vcc")
E("  v_add_u32 v22, 64, v22                ; A2")
E("  v_add_u32 v20, s52, v20               ; A0")
E("  v_add_u32 v21, s52, v21               ; A1")
for i in range(3):
    E(f"  v_add_u32 v{23+i}, 81920, v{20+i}")
for r in range(96, 144):
    E(f"  v_mov_b32 v{r}, 0")

P, Q = 32, 64
def reads(B, slot, ks):
    hi = slot >= 2
    so = (slot & 1) * 40960
    xa = (18 if hi else 16) + ks
    wa = 23 if hi else 20
    r_ = []
    for mb in range(2):
        r_.append([f"  ds_read_b128 v[{B+4*mb}:{B+4*mb+3}], v{xa} offset:{so + mb*2048}"])
    for gu in range(2):
        for i in range(3):
            for jj in range(2):
                r = B + 8 + gu*12 + i*4 + jj*2
                off = so + jj*1536 + ks*6144 + gu*12288
                r_.append([f"  ds_read_b64_tr_b16 v[{r}:{r+1}], v{wa+i} offset:{off}"])
    return r_
def mfmas(B):
    m = []
    for gu in range(2):
        for i in range(3):
            for mb in range(2):
                a = B + 8 + gu*12 + i*4
                b = B + 4*mb
                c = 96 + gu*24 + (mb*3+i)*4
                m.append(f"  v_mfma_f32_16x16x32_bf16 v[{c}:{c+3}], v[{a}:{a+3}], v[{b}:{b+3}], v[{c}:{c+3}]")
    return m

stamp()
E("  s_waitcnt vmcnt(10)")
E("  s_barrier")
stamp()
for g in reads(P, 0, 0):
    for l in g: E(l)
E("  s_waitcnt lgkmcnt(0)")
interleave(mfmas(P), reads(Q, 0, 1), [2]*7)
for i in range(7):
    E("  s_waitcnt vmcnt(5) lgkmcnt(0)")
    E("  s_barrier")
    if i <= 4:
        iss = [next_soff()] + issue_list(((i+3) & 3)*40960, "s58", "s59")
    else:
        iss = [[]] + wd_issue(i-5)
    interleave(mfmas(Q), reads(P, (i+1) & 3, 0) + iss, [2]*7 + [2, 1, 1, 1, 1])
    E("  s_waitcnt lgkmcnt(0)")
    interleave(mfmas(P), reads(Q, (i+1) & 3, 1), [2]*7)
E("  s_waitcnt lgkmcnt(0)")
E("  s_barrier")
interleave(mfmas(Q), wd_issue(2) + wd_issue(3), [1]*10)
stamp()
E("  v_mov_b32 v1, 0")
E("  s_cmp_lg_u32 s44, 0")
E("  s_cbranch_scc1 L_notokld")
E("  buffer_load_dword v30, v1, s[40:43], 0 offen sc1")
E("L_notokld:")
E("  s_lshl_b32 s52, s45, 3")
E("  s_lshl_b32 s53, s66, 1")
E("  s_add_u32 s52, s52, s53")
E("  s_mul_i32 s52, s52, 43")
E("  s_mul_i32 s53, s46, 3")
E("  s_add_u32 s52, s52, s53")
E("  s_lshl_b32 s52, s52, 10")
E("  s_lshl_b32 s53, s67, 11")
E("  s_add_u32 s53, s53, s52")
E("  s_add_u32 s54, s52, 1024")
E("  v_lshlrev_b32 v28, 4, v2              ; lane*16")
E("  s_lshl_b32 s52, s67, 3")
E("  v_add_u32 v29, s52, v28")
E("  s_mov_b32 s68, 0xbfb8aa3b             ; -log2(e)")
E("  s_mov_b32 s69, 0xbfb8aa3b")
E("  s_mov_b32 s50, 1.0")
E("  s_mov_b32 s51, 1.0")
def silu(g, u, t, d):
    E(f"  v_pk_mul_f32 v[{t}:{t+1}], v[{g}:{g+1}], s[68:69]")
    E(f"  v_pk_mul_f32 v[{t+2}:{t+3}], v[{g+2}:{g+3}], s[68:69]")
    for e in range(4):
        E(f"  v_exp_f32 v{t+e}, v{t+e}")
    E(f"  v_pk_mul_f32 v[{t+4}:{t+5}], v[{g}:{g+1}], v[{u}:{u+1}]")
    E(f"  v_pk_mul_f32 v[{t+6}:{t+7}], v[{g+2}:{g+3}], v[{u+2}:{u+3}]")
    E(f"  v_pk_add_f32 v[{t}:{t+1}], v[{t}:{t+1}], s[50:51]")
    E(f"  v_pk_add_f32 v[{t+2}:{t+3}], v[{t+2}:{t+3}], s[50:51]")
    for e in range(4):
        E(f"  v_rcp_f32 v{t+e}, v{t+e}")
    E("  s_nop 0")
    E(f"  v_pk_mul_f32 v[{t+4}:{t+5}], v[{t+4}:{t+5}], v[{t}:{t+1}]")
    E(f"  v_pk_mul_f32 v[{t+6}:{t+7}], v[{t+6}:{t+7}], v[{t+2}:{t+3}]")
    E(f"  v_cvt_pk_bf16_f32 v{d}, v{t+4}, v{t+5}")
    E(f"  v_cvt_pk_bf16_f32 v{d+1}, v{t+6}, v{t+7}")
E("  s_cmp_eq_u32 s46, 14")
E("  s_cselect_b32 s52, s67, 0")
E("  s_cmp_eq_u32 s52, 1")
E("  s_cbranch_scc1 L_st_done")
E("  s_nop 2")
for mb in range(2):
    d = 80 + mb*4
    for i in range(2):
        silu(96 + (mb*3+i)*4, 120 + (mb*3+i)*4, 32 + (mb*2+i)*8, d + 2*i)
    if mb:
        E("  s_add_u32 s53, s53, 44032")
    E(f"  buffer_store_dwordx4 v[{d}:{d+3}], v28, s[32:35], s53 offen sc1")
E("  s_cmp_eq_u32 s46, 14")
E("  s_cbranch_scc1 L_st_done")
for mb in range(2):
    d = 88 + mb*2
    silu(96 + (mb*3+2)*4, 120 + (mb*3+2)*4, 64 + mb*8, d)
    if mb:
        E("  s_add_u32 s54, s54, 44032")
    E(f"  buffer_store_dwordx2 v[{d}:{d+1}], v29, s[32:35], s54 offen sc1")
E("L_st_done:")
E("  s_branch L_join")
E("L_idle1:")
for kg in range(4):
    for g in wd_issue(kg):
        for l in g: E(l)
E("  v_mov_b32 v1, 0")
E("  v_lshlrev_b32 v28, 4, v2              ; lane*16")
E("  s_cmp_lg_u32 s44, 0")
E("  s_cbranch_scc1 L_join")
E("  buffer_load_dword v30, v1, s[40:43], 0 offen sc1")
E("L_join:")
stamp()
E("  s_lshr_b32 s66, s44, 1                ; kg")
E("  s_and_b32 s67, s44, 1                 ; mh")
E("  s_mul_i32 s52, s66, 40960")
E("  v_lshrrev_b32 v5, 2, v2")
E("  v_lshlrev_b32 v5, 7, v5")
E("  v_and_b32 v6, 3, v2")
E("  v_lshl_add_u32 v5, v6, 3, v5")
E("  v_add_u32 v5, s52, v5")
E("  v_bfe_u32 v6, v2, 3, 2                ; y")
for cb in range(4):
    E(f"  v_xor_b32 v7, {cb}, v6")
    E(f"  v_lshl_add_u32 v{16+cb}, v7, 5, v5")
E("  v_add_u32 v29, 44032, v28")
E("  s_lshl_b32 s53, s47, 2")
E("  s_lshl_b32 s54, s67, 1")
E("  s_add_u32 s53, s53, s54")
E("  s_mul_i32 s53, s53, 43")
E("  s_add_u32 s53, s53, s66")
E("  s_lshl_b32 s53, s53, 10               ; h soffset (t=0)")
E("  s_add_u32 s54, s66, 40")
E("  s_lshl_b32 s54, s54, 15")
E("  s_lshl_b32 s59, s67, 14")
E("  s_add_u32 s54, s54, s59")
E("  s_lshl_b32 s59, s67, 11")
E("  s_add_u32 s59, s59, s52")
for r in range(192, 224):
    E(f"  v_mov_b32 v{r}, 0")
E("  s_waitcnt vmcnt(0)")
E("  s_barrier                             ; B2")
stamp()
WP, WQ = 160, 176
def reads2(B, t):
    r_ = []
    so = (t % 10) * 4096
    for cb in range(4):
        for jj in range(2):
            r = B + cb*4 + jj*2
            r_.append([f"  ds_read_b64_tr_b16 v[{r}:{r+1}], v{16+cb} offset:{so + jj*2048}"])
    return r_
def mfmas2(B, t):
    m = []
    for cb in range(4):
        for mb in range(2):
            c = 192 + (mb*4+cb)*4
            a = B + cb*4
            b = 64 + (t*2+mb)*4
            m.append(f"  v_mfma_f32_16x16x32_bf16 v[{c}:{c+3}], v[{a}:{a+3}], v[{b}:{b+3}], v[{c}:{c+3}]")
    return m
for g in reads2(WP, 0):
    for l in g: E(l)
E("  s_cmp_lg_u32 s44, 0")
E("  s_cbranch_scc1 L_nopoll")
E("  s_mov_b32 s58, 0")
E("L_tok:")
E("  v_readfirstlane_b32 s55, v30")
E("  s_cmp_lg_u32 s55, 0")
E("  s_cbranch_scc1 L_tokok")
E("  s_sleep 2")
E("  buffer_load_dword v30, v1, s[40:43], 0 offen sc1")
E("  s_waitcnt vmcnt(0)")
E("  s_add_u32 s58, s58, 1")
E("  s_cmp_lt_u32 s58, 0x100000")
E("  s_cbranch_scc1 L_tok")
E("L_tokok:")
E("  s_cmp_ge_u32 s46, 15")
E("  s_cbranch_scc1 L_noflag")
E("  s_lshl_b32 s56, s45, 8")
E("  s_lshl_b32 s57, s46, 2")
E("  s_add_u32 s56, s56, s57")
E(f"  s_add_u32 s56, s56, {FLAG_OFF}")
E("  s_mov_b64 exec, 1")
E("  buffer_store_dword v30, v1, s[32:35], s56 offen sc1")
E("  s_mov_b64 exec, -1")
E("L_noflag:")
E("  s_lshr_b32 s56, s47, 1")
E("  s_lshl_b32 s56, s56, 8")
E(f"  s_add_u32 s56, s56, {FLAG_OFF}")
E("  v_lshlrev_b32 v8, 2, v2")
E("  s_mov_b64 exec, 0x7fff")
E("  s_mov_b32 s58, 0")
E("L_poll:")
E("  buffer_load_dword v9, v8, s[32:35], s56 offen sc1")
E("  s_waitcnt vmcnt(0)")
E("  v_cmp_ne_u32 vcc, s55, v9")
E("  s_cmp_eq_u64 vcc, 0")
E("  s_cbranch_scc1 L_pollok")
E("  s_sleep 1")
E("  s_add_u32 s58, s58, 1")
E("  s_cmp_lt_u32 s58, 0x100000")
E("  s_cbranch_scc1 L_poll")
E("L_pollok:")
E("  s_mov_b64 exec, -1")
E("L_nopoll:")
E("  s_waitcnt lgkmcnt(0)")
E("  s_barrier")
stamp()
E("  s_mov_b32 m0, s59")
E("  s_add_u32 s58, s54, 7168")
E("  buffer_load_dwordx4 v15, s[28:31], s54 offen lds")
E("  buffer_load_dwordx4 v15, s[28:31], s58 offen offset:1024 lds")
E("  s_cmp_eq_u32 s66, 3")
E(f"  s_cselect_b32 s58, {OOB}, 0")
for t in range(11):
    if t == 10:
        E("  s_add_u32 s53, s53, s58")
    for mb in range(2):
        r = 64 + (t*2+mb)*4
        E(f"  buffer_load_dwordx4 v[{r}:{r+3}], v{28+mb}, s[32:35], s53 offen sc1")
    if t < 10:
        E("  s_add_u32 s53, s53, 4096")
for t in range(10):
    A, B = (WP, WQ) if t % 2 == 0 else (WQ, WP)
    E(f"  s_waitcnt vmcnt({2*(10-t)}) lgkmcnt(0)")
    if t < 9:
        interleave(mfmas2(A, t), reads2(B, t+1), [2]*4)
    else:
        E("  s_barrier")
        interleave(mfmas2(A, t), reads2(B, 10), [2]*4)
E("  s_cmp_eq_u32 s66, 3")
E("  s_cbranch_scc1 L_no10")
E("  s_waitcnt vmcnt(0) lgkmcnt(0)")
for m in mfmas2(WP, 10): E(m)
E("L_no10:")
stamp()
E("  s_lshl_b32 s53, s67, 13")
E("  s_add_u32 s53, s53, s52")
E("  s_add_u32 s53, s53, 4096")
E("  v_add_u32 v5, s53, v28")
E("  s_lshr_b32 s54, s66, 1                ; mh'")
E("  s_lshl_b32 s54, s54, 13")
E("  s_and_b32 s55, s66, 1")
E("  s_lshl_b32 s55, s55, 12")
E("  s_add_u32 s54, s54, s55")
E("  s_lshl_b32 s55, s67, 11")
E("  s_add_u32 s54, s54, s55")
E("  s_add_u32 s54, s54, 4096")
E("  v_add_u32 v6, s54, v28")
E("  v_add_u32 v7, 81920, v6")
E("  s_waitcnt lgkmcnt(0)")
for t in range(8):
    c = 192 + t*4
    E(f"  ds_write_b128 v5, v[{c}:{c+3}] offset:{t*1024}")
E("  s_lshl_b32 s53, s47, 6")
E("  s_lshl_b32 s54, s66, 4")
E("  s_add_u32 s53, s53, s54")
E("  v_and_b32 v8, 15, v2")
E("  v_add_u32 v8, s53, v8")
E("  v_lshlrev_b32 v8, 10, v8")
E("  s_lshl_b32 s54, s67, 6")
E("  s_add_u32 s54, s54, s49")
E("  v_add_u32 v8, s54, v8")
E("  v_and_b32 v9, 1, v4")
E("  v_lshl_add_u32 v8, v9, 5, v8")
E("  v_lshrrev_b32 v9, 1, v4")
E("  v_lshl_add_u32 v8, v9, 4, v8")
E("  s_waitcnt lgkmcnt(0)")
E("  s_barrier                             ; B5")
for kg in range(4):
    for h in range(2):
        r = 32 + (kg*2+h)*4
        E(f"  ds_read_b128 v[{r}:{r+3}], v{6 if kg < 2 else 7} offset:{(kg&1)*40960 + h*1024}")
E("  s_waitcnt lgkmcnt(0)")
for h in range(2):
    for q in range(2):
        r0 = 32 + h*4 + q*2
        E(f"  v_pk_add_f32 v[{r0}:{r0+1}], v[{r0}:{r0+1}], v[{r0+8}:{r0+9}]")
        E(f"  v_pk_add_f32 v[{r0+16}:{r0+17}], v[{r0+16}:{r0+17}], v[{r0+24}:{r0+25}]")
        E(f"  v_pk_add_f32 v[{r0}:{r0+1}], v[{r0}:{r0+1}], v[{r0+16}:{r0+17}]")
for h in range(2):
    r0 = 32 + h*4
    E(f"  v_cvt_pk_bf16_f32 v{64+2*h}, v{r0}, v{r0+1}")
    E(f"  v_cvt_pk_bf16_f32 v{65+2*h}, v{r0+2}, v{r0+3}")
E("  s_nop 1")
E("  v_permlane16_swap_b32 v64, v66")
E("  v_permlane16_swap_b32 v65, v67")
E("  buffer_store_dwordx4 v[64:67], v8, s[36:39], 0 offen")
stamp()
stamp_flush()
E("L_done:")
E("  s_endpgm")
E('.section .rodata,"a"')
E(".p2align 6")
E(f".amdhsa_kernel {K}")
E("  .amdhsa_next_free_vgpr 224")
E("  .amdhsa_next_free_sgpr 100")
E("  .amdhsa_accum_offset 224")
E("  .amdhsa_group_segment_fixed_size 0")
E("  .amdhsa_kernarg_size 56")
E("  .amdhsa_user_sgpr_count 2")
E("  .amdhsa_user_sgpr_kernarg_segment_ptr 1")
E("  .amdhsa_system_sgpr_workgroup_id_x 1")
E(".end_amdhsa_kernel")
path = sys.argv[1] if len(sys.argv) > 1 else "standalone__swiglu_ffn__prompt.s"
open(path, "w").write(HDR + "\n".join(out) + "\n")
```

```python
import sys, os

HDR = """; Kernarg layout for this problem (56 bytes, ptrs only, base s[0:1]):
; @launch kernel=ffn_up_kernel grid=(256,1,1) block=(512,1,1) lds=163840
; @launch kernel=ffn_down_kernel grid=(256,1,1) block=(256,1,1) lds=163840
.amdgcn_target "amdgcn-amd-amdhsa--gfx950"
.text
"""
STAMP = int(os.environ.get("STAMP", "0"))
NODMA = int(os.environ.get("NODMA", "0"))
NOMFMA = int(os.environ.get("NOMFMA", "0"))
NOREAD = int(os.environ.get("NOREAD", "0"))
NOROT = int(os.environ.get("NOROT", "0"))
NOPF = int(os.environ.get("NOPF", "0"))
out = []
def E(s=""):
    if NOMFMA and "v_mfma" in s: return
    if NOREAD and ("ds_read" in s): return
    if NODMA and " lds" in s and "buffer_load" in s: return
    out.append(s)
def stamp(n):
    if STAMP:
        E(f"  s_memrealtime s[{60+2*n}:{61+2*n}]")
        if n == 0:
            E("  s_memtime s[76:77]")
def stamp_flush(kidx, n):
    if not STAMP: return
    E("  s_waitcnt vmcnt(0) lgkmcnt(0)")
    E(f"  s_memrealtime s[{60+2*n}:{61+2*n}]")
    E("  s_memtime s[78:79]")
    E("  s_waitcnt lgkmcnt(0)")
    E("  s_sub_u32 s78, s78, s76")
    E("  s_cmp_lg_u32 s17, 0")
    E(f"  s_cbranch_scc1 Lst_skip{kidx}")
    E(f"  s_add_u32 s58, s2, {kidx*256}")
    E("  s_lshl_b32 s58, s58, 7")
    E("  s_add_u32 s58, s58, 0x800000")
    E("  v_mov_b32 v1, s58")
    E("  s_mov_b64 exec, 1")
    for i in range(n+1):
        E(f"  v_mov_b32 v2, s{60+2*i}")
        E(f"  v_mov_b32 v3, s{61+2*i}")
        E(f"  global_store_dwordx2 v1, v[2:3], s[10:11] offset:{8*i}")
        E("  s_nop 1")
    E("  v_mov_b32 v2, s78")
    E("  v_mov_b32 v3, 0")
    E("  global_store_dwordx2 v1, v[2:3], s[10:11] offset:120")
    E(f"Lst_skip{kidx}:")

X_BYTES = 2048*1024
W_BYTES = 512*2752
WD_BYTES = 1376*1024
H_BYTES = 128*43*1024
OUT_BYTES = 2048*1024
OOB = 0x40000000

def interleave(mf, others, pattern):
    oi = 0
    for i, m in enumerate(mf):
        E(m)
        n = pattern[i] if i < len(pattern) else 0
        for _ in range(n):
            if oi < len(others):
                for l in others[oi]: E(l)
                oi += 1
    while oi < len(others):
        for l in others[oi]: E(l)
        oi += 1

def k1():
    E(".globl ffn_up_kernel")
    E(".p2align 8")
    E(".type ffn_up_kernel,@function")
    E("ffn_up_kernel:")
    E("  s_cmp_ge_u32 s2, 256")
    E("  s_cbranch_scc1 L1_done")
    stamp(0)
    E("  s_load_dwordx4 s[4:7], s[0:1], 0      ; x, wg")
    E("  s_load_dwordx4 s[8:11], s[0:1], 16")
    E("  s_load_dwordx2 s[52:53], s[0:1], 48   ; ws")
    E("  s_and_b32 s12, s2, 7                  ; xcd")
    E("  s_lshr_b32 s13, s2, 3                 ; idx")
    E("  s_and_b32 s14, s12, 1")
    E("  s_lshl_b32 s14, s14, 3")
    E("  s_and_b32 s15, s13, 7")
    E("  s_add_u32 s14, s14, s15               ; mt (0..15)")
    E("  s_lshr_b32 s15, s12, 1")
    E("  s_lshl_b32 s15, s15, 2")
    E("  s_lshr_b32 s16, s13, 3")
    E("  s_add_u32 s15, s15, s16               ; nt (0..15)")
    E("  v_lshrrev_b32 v1, 6, v0")
    E("  v_and_b32 v2, 63, v0                  ; lane")
    E("  v_readfirstlane_b32 s17, v1")
    E("  s_lshl_b32 s18, s2, 3")
    E("  s_add_u32 s18, s18, s17")
    E("  s_mul_i32 s18, s18, 768               ; *6 lines *128B")
    E("  v_lshlrev_b32 v9, 7, v2")
    E("  v_add_u32 v9, s18, v9")
    E("  v_cmp_gt_u32 vcc, 6, v2")
    E("  v_mov_b32 v8, 0x40000000")
    E("  s_nop 0")
    E("  v_cndmask_b32 v9, v8, v9, vcc")
    E("  v_lshrrev_b32 v3, 3, v2               ; lane>>3")
    E("  v_lshrrev_b32 v4, 4, v2               ; g = lane>>4")
    E("  v_and_b32 v5, 7, v2                   ; lane&7")
    E("  s_lshl_b32 s18, s14, 7                ; mt*128")
    E("  s_lshl_b32 s19, s17, 4                ; 16w")
    E("  s_add_u32 s18, s18, s19               ; mt*128+16w")
    E("  v_add_u32 v6, s18, v3")
    E("  v_lshlrev_b32 v6, 10, v6              ; *1024")
    E("  v_xor_b32 v7, v5, v4                  ; j (i=0)")
    E("  v_lshl_add_u32 v10, v7, 4, v6         ; voff x0")
    E("  v_xor_b32 v7, 4, v7                   ; j (i=1)")
    E("  v_lshl_add_u32 v11, v7, 4, v6")
    E("  v_add_u32 v11, 7168, v11")
    E("  s_and_b32 s19, s17, 3                 ; w&3")
    E("  s_mul_i32 s19, s19, 192               ; 3*64*(w&3)")
    E("  s_mul_i32 s20, s15, 192")
    for i in range(3):
        E(f"  v_add_u32 v6, s19, v2")
        if i:
            E(f"  v_add_u32 v6, {64*i}, v6              ; U")
        E(f"  v_mul_u32_u24 v7, 0xaaab, v6")
        E(f"  v_lshrrev_b32 v7, 19, v7              ; q = U/12")
        E(f"  v_mul_u32_u24 v8, 12, v7")
        E(f"  v_sub_u32 v8, v6, v8                  ; j' = U%12")
        E(f"  v_and_b32 v19, 4, v7                  ; q&4")
        E(f"  v_lshrrev_b32 v15, 1, v19             ; 2*bit2(q)")
        E(f"  v_xor_b32 v8, v8, v15                 ; j")
        E(f"  v_lshlrev_b32 v19, 1, v19             ; (q&4)<<1")
        E(f"  v_and_b32 v15, 8, v7")
        E(f"  v_lshrrev_b32 v15, 1, v15             ; (q&8)>>1")
        E(f"  v_and_b32 v7, 0x33, v7")
        E(f"  v_or3_b32 v7, v7, v19, v15            ; k")
        E(f"  v_mul_u32_u24 v7, 2752, v7")
        E(f"  v_lshl_add_u32 v7, v8, 4, v7")
        E(f"  v_add_u32 v{12+i}, s20, v7")
        if i:
            E(f"  v_subrev_u32 v{12+i}, {1024*i}, v{12+i}")
    if NOROT:
        E("  s_mov_b32 s50, 0")
    else:
        E("  s_lshl_b32 s50, s15, 1")
        E("  s_add_u32 s50, s50, s14")
        E("  s_and_b32 s50, s50, 7                 ; rot")
    E("  s_lshl_b32 s36, s17, 11               ; 2048w")
    E("  s_mul_i32 s37, s17, 3072")
    E("  s_add_u32 s37, s37, 16384             ; W m0 base")
    E("  s_waitcnt lgkmcnt(0)")
    E("  s_mov_b32 s24, s4")
    E("  s_and_b32 s25, s5, 0xffff")
    E(f"  s_mov_b32 s26, {X_BYTES}")
    E("  s_mov_b32 s27, 0x20000")
    E("  s_cmp_lt_u32 s17, 4")
    E("  s_cselect_b32 s28, s6, s8")
    E("  s_cselect_b32 s29, s7, s9")
    E("  s_and_b32 s29, s29, 0xffff")
    E(f"  s_mov_b32 s30, {W_BYTES}")
    E("  s_mov_b32 s31, 0x20000")
    E("  s_mov_b32 s32, s10")
    E("  s_and_b32 s33, s11, 0xffff")
    E(f"  s_mov_b32 s34, {WD_BYTES}")
    E("  s_mov_b32 s35, 0x20000")
    if not NOPF:
        E("  buffer_load_dword v31, v9, s[32:35], 0 offen")
    E("  s_cmp_ge_u32 s15, 15")
    E("  s_cbranch_scc1 L1_done")

    def next_soff():
        return ["  s_lshl_b32 s38, s50, 7",
                "  s_mul_i32 s39, s50, 176128",
                "  s_add_u32 s50, s50, 1",
                "  s_and_b32 s50, s50, 7"]
    def issue_list(slot):
        g = []
        m0x = f"  s_add_u32 m0, s36, {slot}"
        m0w = f"  s_add_u32 m0, s37, {slot}"
        g.append([m0x, "  s_nop 0", "  buffer_load_dwordx4 v10, s[24:27], s38 offen lds"])
        g.append(["  buffer_load_dwordx4 v11, s[24:27], s38 offen offset:1024 lds"])
        g.append([m0w, "  s_nop 0", "  buffer_load_dwordx4 v12, s[28:31], s39 offen lds"])
        g.append(["  buffer_load_dwordx4 v13, s[28:31], s39 offen offset:1024 lds"])
        g.append(["  buffer_load_dwordx4 v14, s[28:31], s39 offen offset:2048 lds"])
        return g
    for st in range(3):
        for l in next_soff(): E(l)
        for g in issue_list(st*40960):
            for l in g: E(l)
    E("  s_lshr_b32 s21, s17, 1                ; wm")
    E("  s_and_b32 s22, s17, 1                 ; wn")
    E("  v_and_b32 v6, 15, v2")
    E("  v_lshlrev_b32 v6, 7, v6               ; (l&15)*128")
    E("  s_lshl_b32 s23, s21, 12               ; wm*4096")
    E("  v_add_u32 v6, s23, v6")
    E("  v_bfe_u32 v7, v2, 1, 3                ; (l>>1)&7")
    E("  v_xor_b32 v7, v7, v4")
    E("  v_lshl_add_u32 v16, v7, 4, v6         ; xa0")
    E("  v_xor_b32 v17, 64, v16                ; xa1")
    E("  v_bfe_u32 v6, v2, 2, 2                ; r")
    E("  v_bfe_u32 v7, v2, 4, 1                ; g&1")
    E("  v_lshl_add_u32 v6, v7, 2, v6          ; r+4(g&1)")
    E("  v_lshrrev_b32 v8, 5, v2               ; g>>1")
    E("  v_lshl_add_u32 v6, v8, 4, v6")
    E("  v_mul_u32_u24 v6, 192, v6")
    E("  v_xor_b32 v7, s22, v7                 ; wn^(g&1)")
    E("  v_lshl_add_u32 v6, v7, 5, v6")
    E("  v_and_b32 v8, 3, v2")
    E("  v_lshl_add_u32 v6, v8, 3, v6")
    E("  v_add_u32 v18, 16384, v6              ; wa")
    E("  s_mov_b32 s32, s52")
    E("  s_and_b32 s33, s53, 0xffff")
    E(f"  s_mov_b32 s34, {H_BYTES}")
    if STAMP:
        E("  s_mov_b32 s10, s52")
        E("  s_mov_b32 s11, s53")
    for r in range(96, 144):
        E(f"  v_mov_b32 v{r}, 0")

    P, Q = 32, 64
    def reads(B, ks, xa, wa):
        r_ = []
        for mb in range(2):
            r_.append([f"  ds_read_b128 v[{B+4*mb}:{B+4*mb+3}], v{xa} offset:{mb*2048}"])
        for gu in range(2):
            for i in range(3):
                for jj in range(2):
                    r = B + 8 + gu*12 + i*4 + jj*2
                    off = i*64 + jj*1536 + ks*6144 + gu*12288
                    r_.append([f"  ds_read_b64_tr_b16 v[{r}:{r+1}], v{wa} offset:{off}"])
        return r_
    def mfmas(B):
        m = []
        for gu in range(2):
            for i in range(3):
                for mb in range(2):
                    a = B + 8 + gu*12 + i*4
                    b = B + 4*mb
                    c = 96 + gu*24 + (mb*3+i)*4
                    m.append(f"  v_mfma_f32_16x16x32_bf16 v[{c}:{c+3}], v[{a}:{a+3}], v[{b}:{b+3}], v[{c}:{c+3}]")
        return m

    stamp(1)
    E("  s_waitcnt vmcnt(10)")
    E("  s_barrier")
    stamp(2)
    for g in reads(P, 0, 16, 18):
        for l in g: E(l)
    E("  s_mov_b32 s40, 0                      ; i")
    E("  s_mov_b32 s41, 40960")
    E("  s_mov_b32 s42, 122880")
    E("  s_waitcnt lgkmcnt(0)")
    interleave(mfmas(P), reads(Q, 1, 17, 18), [2]*7)
    E("L1_loop:")
    E("  s_waitcnt vmcnt(5) lgkmcnt(0)")
    E("  s_barrier")
    E("  v_add_u32 v19, s41, v16")
    E("  v_add_u32 v21, s41, v18")
    E("  v_add_u32 v20, s41, v17")
    pre = next_soff() + ["  s_cmp_gt_u32 s40, 4",
                         f"  s_cselect_b32 s38, {OOB}, s38",
                         f"  s_cselect_b32 s39, {OOB}, s39"]
    iss = issue_list("s42")
    others = reads(P, 0, 19, 21) + [pre] + iss
    interleave(mfmas(Q), others, [2]*7 + [2, 1, 1, 1, 1])
    E("  s_add_u32 s42, s42, 40960")
    E("  s_cmp_eq_u32 s42, 163840")
    E("  s_cselect_b32 s42, 0, s42")
    E("  s_waitcnt lgkmcnt(0)")
    tail = [["  s_add_u32 s41, s41, 40960", "  s_cmp_eq_u32 s41, 163840", "  s_cselect_b32 s41, 0, s41"],
            ["  s_add_u32 s40, s40, 1", "  s_cmp_lt_u32 s40, 7"]]
    interleave(mfmas(P), reads(Q, 1, 20, 21) + tail, [2]*7 + [1, 1])
    E("  s_cbranch_scc1 L1_loop")
    E("  s_waitcnt lgkmcnt(0)")
    for m in mfmas(Q): E(m)
    stamp(3)
    E("  s_lshl_b32 s43, s14, 3")
    E("  s_lshl_b32 s44, s21, 1")
    E("  s_add_u32 s43, s43, s44")
    E("  s_mul_i32 s43, s43, 43")
    E("  s_mul_i32 s44, s15, 3")
    E("  s_add_u32 s43, s43, s44")
    E("  s_lshl_b32 s43, s43, 10")
    E("  s_lshl_b32 s44, s22, 3")
    E("  v_lshlrev_b32 v22, 4, v2")
    E("  v_add_u32 v22, s44, v22")
    E("  s_mov_b32 s46, 0xbfb8aa3b             ; -log2(e)")
    E("  s_mov_b32 s47, 0xbfb8aa3b")
    E("  s_mov_b32 s48, 1.0")
    E("  s_mov_b32 s49, 1.0")
    for i in range(3):
        if i == 1:
            E("  s_cmp_eq_u32 s15, 14")
            E("  s_cbranch_scc1 L1_fin")
        for mb in range(2):
            g = 96 + (mb*3+i)*4
            u = 120 + (mb*3+i)*4
            t = 32 + (i*2+mb)*8
            E(f"  v_pk_mul_f32 v[{t}:{t+1}], v[{g}:{g+1}], s[46:47]")
            E(f"  v_pk_mul_f32 v[{t+2}:{t+3}], v[{g+2}:{g+3}], s[46:47]")
            for e in range(4):
                E(f"  v_exp_f32 v{t+e}, v{t+e}")
            if i == 0 and mb == 0:
                E("  s_nop 3")
            E(f"  v_pk_mul_f32 v[{t+4}:{t+5}], v[{g}:{g+1}], v[{u}:{u+1}]")
            E(f"  v_pk_mul_f32 v[{t+6}:{t+7}], v[{g+2}:{g+3}], v[{u+2}:{u+3}]")
            E(f"  v_pk_add_f32 v[{t}:{t+1}], v[{t}:{t+1}], s[48:49]")
            E(f"  v_pk_add_f32 v[{t+2}:{t+3}], v[{t+2}:{t+3}], s[48:49]")
            for e in range(4):
                E(f"  v_rcp_f32 v{t+e}, v{t+e}")
            E("  s_nop 0")
            E(f"  v_pk_mul_f32 v[{t+4}:{t+5}], v[{t+4}:{t+5}], v[{t}:{t+1}]")
            E(f"  v_pk_mul_f32 v[{t+6}:{t+7}], v[{t+6}:{t+7}], v[{t+2}:{t+3}]")
            E(f"  v_cvt_pk_bf16_f32 v{t}, v{t+4}, v{t+5}")
            E(f"  v_cvt_pk_bf16_f32 v{t+1}, v{t+6}, v{t+7}")
            so = (mb*43 + i)*1024
            if so:
                E(f"  s_add_u32 s45, s43, {so}")
                E(f"  buffer_store_dwordx2 v[{t}:{t+1}], v22, s[32:35], s45 offen")
            else:
                E(f"  buffer_store_dwordx2 v[{t}:{t+1}], v22, s[32:35], s43 offen")
    E("L1_fin:")
    stamp(4)
    stamp_flush(0, 5)
    E("L1_done:")
    E("  s_endpgm")

def k2():
    E(".globl ffn_down_kernel")
    E(".p2align 8")
    E(".type ffn_down_kernel,@function")
    E("ffn_down_kernel:")
    E("  s_cmp_ge_u32 s2, 256")
    E("  s_cbranch_scc1 L2_done")
    stamp(0)
    E("  s_load_dwordx4 s[4:7], s[0:1], 24")
    E("  s_load_dwordx2 s[10:11], s[0:1], 48   ; ws")
    E("  s_and_b32 s12, s2, 7                  ; xcd")
    E("  s_lshr_b32 s13, s2, 3                 ; idx")
    E("  s_lshl_b32 s14, s12, 2")
    E("  s_and_b32 s16, s13, 3")
    E("  s_add_u32 s14, s14, s16               ; mt (0..31)")
    E("  s_lshr_b32 s15, s13, 2                ; nt (0..7)")
    E("  v_lshrrev_b32 v1, 6, v0")
    E("  v_and_b32 v2, 63, v0                  ; lane")
    E("  v_readfirstlane_b32 s17, v1")
    E("  v_lshlrev_b32 v10, 4, v2")
    for mb in range(1, 4):
        E(f"  v_add_u32 v{10+mb}, {mb*43008}, v10")
    E("  v_lshrrev_b32 v3, 3, v2")
    E("  v_lshlrev_b32 v3, 10, v3")
    E("  v_lshrrev_b32 v4, 4, v2               ; g")
    E("  v_lshlrev_b32 v5, 1, v4")
    E("  v_and_b32 v6, 7, v2")
    E("  v_xor_b32 v5, v5, v6")
    E("  v_lshl_add_u32 v3, v5, 4, v3")
    E("  s_lshl_b32 s18, s15, 7")
    E("  v_add_u32 v14, s18, v3")
    for e in range(1, 4):
        E(f"  v_add_u32 v{14+e}, {e*7168}, v14")
    E("  s_mul_i32 s19, s17, 40960")
    E("  s_mul_i32 s20, s14, 176128            ; mt*4*44032")
    E("  s_lshl_b32 s21, s17, 10")
    E("  s_add_u32 s20, s20, s21")
    E("  s_lshl_b32 s21, s17, 15")
    if NOROT:
        E("  s_mov_b32 s50, 0")
    else:
        E("  s_mul_i32 s50, s15, 11")
        E("  s_lshr_b32 s50, s50, 3")
        E("  s_mul_i32 s51, s16, 3")
        E("  s_add_u32 s50, s50, s51")
        E("  s_sub_u32 s51, s50, 11")
        E("  s_cmp_ge_u32 s50, 11")
        E("  s_cselect_b32 s50, s51, s50           ; t0")
    E("  s_cmp_eq_u32 s17, 3")
    E("  s_cselect_b32 s22, 10, 11")
    E("  s_mov_b32 s51, 0")
    E("  s_waitcnt lgkmcnt(0)")
    E("  s_mov_b32 s24, s10")
    E("  s_and_b32 s25, s11, 0xffff")
    E(f"  s_mov_b32 s26, {H_BYTES}")
    E("  s_mov_b32 s27, 0x20000")
    E("  s_mov_b32 s28, s4")
    E("  s_and_b32 s29, s5, 0xffff")
    E(f"  s_mov_b32 s30, {WD_BYTES}")
    E("  s_mov_b32 s31, 0x20000")
    E("  s_mov_b32 s32, s6")
    E("  s_and_b32 s33, s7, 0xffff")
    E(f"  s_mov_b32 s34, {OUT_BYTES}")
    E("  s_mov_b32 s35, 0x20000")

    def issue_list():
        g = []
        g.append(["  s_lshl_b32 s38, s50, 12",
                  "  s_add_u32 s38, s38, s20",
                  "  s_lshl_b32 s39, s50, 17",
                  "  s_add_u32 s39, s39, s21"])
        g.append(["  s_cmp_eq_u32 s50, s22",
                  f"  s_cselect_b32 s38, {OOB}, s38",
                  "  s_cmp_ge_u32 s51, 11",
                  f"  s_cselect_b32 s38, {OOB}, s38"])
        g.append([f"  s_cselect_b32 s39, {OOB}, s39",
                  "  s_mov_b32 m0, s23",
                  "  s_add_u32 s51, s51, 1",
                  "  buffer_load_dwordx4 v10, s[24:27], s38 offen lds"])
        for mb in range(1, 4):
            g.append([f"  buffer_load_dwordx4 v{10+mb}, s[24:27], s38 offen offset:{mb*1024} lds"])
        g.append(["  s_add_u32 m0, s23, 4096",
                  "  s_add_u32 s50, s50, 1",
                  "  buffer_load_dwordx4 v14, s[28:31], s39 offen lds"])
        for e in range(1, 4):
            g.append([f"  buffer_load_dwordx4 v{14+e}, s[28:31], s39 offen offset:{e*1024} lds"])
        g.append(["  s_cmp_eq_u32 s50, 11",
                  "  s_cselect_b32 s50, 0, s50",
                  "  s_add_u32 s23, s23, 8192",
                  "  s_cmp_eq_u32 s23, s54",
                  "  s_cselect_b32 s23, s19, s23"])
        return g

    E("  s_mov_b32 s23, s19")
    E("  s_add_u32 s54, s19, 40960")
    E("L2_pro:")
    for g in issue_list():
        for l in g: E(l)
    E("  s_cmp_lt_u32 s51, 5")
    E("  s_cbranch_scc1 L2_pro")
    E("  v_add_u32 v18, s19, v10")
    E("  v_lshrrev_b32 v5, 2, v2")
    E("  v_lshlrev_b32 v5, 7, v5")
    E("  v_and_b32 v6, 3, v2")
    E("  v_lshl_add_u32 v5, v6, 3, v5")
    E("  v_add_u32 v5, s19, v5")
    E("  v_add_u32 v5, 4096, v5")
    E("  v_bfe_u32 v6, v2, 3, 2                ; y")
    for cb in range(4):
        E(f"  v_xor_b32 v7, {cb}, v6")
        E(f"  v_lshl_add_u32 v{19+cb}, v7, 5, v5")
    for r in range(96, 160):
        E(f"  v_mov_b32 v{r}, 0")
    P, Q = 32, 64
    def reads(B, base):
        r_ = []
        for mb in range(4):
            r_.append([f"  ds_read_b128 v[{B+4*mb}:{B+3+4*mb}], v{base[0]} offset:{mb*1024}"])
        for cb in range(4):
            for jj in range(2):
                r = B + 16 + cb*4 + jj*2
                r_.append([f"  ds_read_b64_tr_b16 v[{r}:{r+1}], v{base[1+cb]} offset:{jj*2048}"])
        return r_
    def mfmas(B):
        m = []
        for cb in range(4):
            for mb in range(4):
                c = 96 + (mb*4+cb)*4
                a = B + 16 + cb*4
                b = B + mb*4
                m.append(f"  v_mfma_f32_16x16x32_bf16 v[{c}:{c+3}], v[{a}:{a+3}], v[{b}:{b+3}], v[{c}:{c+3}]")
        return m
    def addr():
        l = [f"  v_add_u32 v{23+i}, s37, v{18+i}" for i in range(5)]
        l += ["  s_add_u32 s37, s37, 8192", "  s_cmp_eq_u32 s37, 40960", "  s_cselect_b32 s37, 0, s37"]
        return l
    stamp(1)
    E("  s_waitcnt vmcnt(32)")
    stamp(2)
    for g in reads(P, [18, 19, 20, 21, 22]):
        for l in g: E(l)
    E("  s_mov_b32 s37, 8192")
    E("  s_mov_b32 s36, 0")
    E("L2_loop:")
    for (A, B) in ((P, Q), (Q, P)):
        E("  s_waitcnt vmcnt(24) lgkmcnt(0)")
        for l in addr(): E(l)
        others = reads(B, [23, 24, 25, 26, 27]) + issue_list()
        if A == Q:
            others += [["  s_add_u32 s36, s36, 1", "  s_cmp_lt_u32 s36, 5"]]
        interleave(mfmas(A), others, [2]*6 + [1, 1, 1, 2, 2, 2, 2, 1, 1, 1])
    E("  s_cbranch_scc1 L2_loop")
    E("  s_waitcnt lgkmcnt(0)")
    for m in mfmas(P): E(m)
    stamp(3)
    E("  s_waitcnt vmcnt(0)")
    E("  s_lshl_b32 s38, s17, 12               ; w*4096")
    E("  v_add_u32 v23, s38, v10               ; lane*16 + w*4096")
    E("  v_add_u32 v24, 81920, v23")
    E("  s_nop 4")
    for t in range(16):
        c = 96 + t*4
        E(f"  ds_write_b128 v18, v[{c}:{c+3}] offset:{t*1024}")
    E("  s_lshl_b32 s38, s14, 6")
    E("  s_lshl_b32 s39, s17, 4")
    E("  s_add_u32 s38, s38, s39")
    E("  v_and_b32 v5, 15, v2")
    E("  v_add_u32 v5, s38, v5")
    E("  v_lshlrev_b32 v5, 10, v5")
    E("  v_add_u32 v5, s18, v5")
    E("  v_and_b32 v6, 1, v4")
    E("  v_lshl_add_u32 v5, v6, 5, v5")
    E("  v_lshrrev_b32 v6, 1, v4")
    E("  v_lshl_add_u32 v5, v6, 4, v5")
    E("  s_waitcnt lgkmcnt(0)")
    E("  s_barrier")
    for ww in range(4):
        for cb in range(4):
            r = 96 + (ww*4+cb)*4
            base = 23 if ww < 2 else 24
            off = (ww & 1)*40960 + cb*1024
            E(f"  ds_read_b128 v[{r}:{r+3}], v{base} offset:{off}")
    E("  s_waitcnt lgkmcnt(0)")
    for cb in range(4):
        for h in range(2):
            r0 = 96 + cb*4 + h*2
            E(f"  v_pk_add_f32 v[{r0}:{r0+1}], v[{r0}:{r0+1}], v[{r0+16}:{r0+17}]")
            E(f"  v_pk_add_f32 v[{r0+32}:{r0+33}], v[{r0+32}:{r0+33}], v[{r0+48}:{r0+49}]")
            E(f"  v_pk_add_f32 v[{r0}:{r0+1}], v[{r0}:{r0+1}], v[{r0+32}:{r0+33}]")
    for p in range(2):
        for h in range(2):
            cb = 2*p + h
            r0 = 96 + cb*4
            E(f"  v_cvt_pk_bf16_f32 v{32+4*p+2*h}, v{r0}, v{r0+1}")
            E(f"  v_cvt_pk_bf16_f32 v{33+4*p+2*h}, v{r0+2}, v{r0+3}")
    E("  s_nop 1")
    for p in range(2):
        E(f"  v_permlane16_swap_b32 v{32+4*p}, v{34+4*p}")
        E(f"  v_permlane16_swap_b32 v{33+4*p}, v{35+4*p}")
    for p in range(2):
        E(f"  buffer_store_dwordx4 v[{32+4*p}:{35+4*p}], v5, s[32:35], 0 offen offset:{p*64}")
    stamp(4)
    stamp_flush(1, 5)
    E("L2_done:")
    E("  s_endpgm")

def kd(name, vg, sg):
    E(f".amdhsa_kernel {name}")
    E(f"  .amdhsa_next_free_vgpr {vg}")
    E(f"  .amdhsa_next_free_sgpr {sg}")
    E(f"  .amdhsa_accum_offset {(vg+3)//4*4}")
    E("  .amdhsa_group_segment_fixed_size 0")
    E("  .amdhsa_kernarg_size 56")
    E("  .amdhsa_user_sgpr_count 2")
    E("  .amdhsa_user_sgpr_kernarg_segment_ptr 1")
    E("  .amdhsa_system_sgpr_workgroup_id_x 1")
    E(".end_amdhsa_kernel")

k1()
k2()
E('.section .rodata,"a"')
E(".p2align 6")
kd("ffn_up_kernel", 144, 80)
E(".p2align 6")
kd("ffn_down_kernel", 160, 80)
path = sys.argv[1] if len(sys.argv) > 1 else "standalone__swiglu_ffn__prompt.s"
open(path, "w").write(HDR + "\n".join(out) + "\n")
```

```python
import sys, os

HDR = """; Kernarg layout for this problem (56 bytes, ptrs only, base s[0:1]):
; @launch grid=(256,1,1) block=(512,1,1) lds=163840
.amdgcn_target "amdgcn-amd-amdhsa--gfx950"
.text
"""
STAMP = int(os.environ.get("STAMP", "0"))
NOROT = int(os.environ.get("NOROT", "0"))
FULLROT = int(os.environ.get("FULLROT", "0"))
out = []
def E(s=""):
    out.append(s)
NST = [0]
def stamp():
    if STAMP:
        n = NST[0]; NST[0] += 1
        E(f"  s_memrealtime s[{70+2*n}:{71+2*n}]")
        if n == 0:
            E("  s_memtime s[96:97]")
def stamp_flush():
    if not STAMP: return
    n = NST[0]
    E("  s_waitcnt vmcnt(0) lgkmcnt(0)")
    E(f"  s_memrealtime s[{70+2*n}:{71+2*n}]")
    E("  s_memtime s[98:99]")
    E("  s_waitcnt lgkmcnt(0)")
    E("  s_sub_u32 s98, s98, s96")
    E("  s_cmp_lg_u32 s44, 0")
    E(f"  s_cbranch_scc1 Lst_skip")
    E("  s_lshl_b32 s58, s2, 7")
    E("  s_add_u32 s58, s58, 0x800000")
    E("  v_mov_b32 v1, s58")
    E("  s_mov_b64 exec, 1")
    for i in range(n+1):
        E(f"  v_mov_b32 v2, s{70+2*i}")
        E(f"  v_mov_b32 v3, s{71+2*i}")
        E(f"  global_store_dwordx2 v1, v[2:3], s[16:17] offset:{8*i}")
        E("  s_nop 1")
    E("  v_mov_b32 v2, s98")
    E("  v_mov_b32 v3, 0")
    E("  global_store_dwordx2 v1, v[2:3], s[16:17] offset:120")
    E(f"Lst_skip:")

X_BYTES = 2048*1024
W_BYTES = 512*2752
WD_BYTES = 1376*1024
WS_BYTES = 8 << 20
FLAG_OFF = 6 << 20
OUT_BYTES = 2048*1024
OOB = 0x40000000

def interleave(mf, others, pattern):
    oi = 0
    for i, m in enumerate(mf):
        E(m)
        n = pattern[i] if i < len(pattern) else 0
        for _ in range(n):
            if oi < len(others):
                for l in others[oi]: E(l)
                oi += 1
    while oi < len(others):
        for l in others[oi]: E(l)
        oi += 1

def srd(d, lo, hi, nbytes):
    E(f"  s_mov_b32 s{d}, s{lo}")
    E(f"  s_and_b32 s{d+1}, s{hi}, 0xffff")
    E(f"  s_mov_b32 s{d+2}, {nbytes}")
    E(f"  s_mov_b32 s{d+3}, 0x20000")

K = "standalone__swiglu_ffn__prompt_kernel"
E(f".globl {K}")
E(".p2align 8")
E(f".type {K},@function")
E(f"{K}:")
E("  s_cmp_ge_u32 s2, 256")
E("  s_cbranch_scc1 L_done")
stamp()
E("  s_load_dwordx8 s[4:11], s[0:1], 0")
E("  s_load_dwordx4 s[12:15], s[0:1], 32")
E("  s_load_dwordx2 s[16:17], s[0:1], 48   ; ws")
E("  s_and_b32 s50, s2, 7")
E("  s_lshr_b32 s51, s2, 3                 ; idx")
E("  s_and_b32 s45, s50, 1")
E("  s_lshl_b32 s45, s45, 3")
E("  s_and_b32 s52, s51, 7")
E("  s_add_u32 s45, s45, s52               ; mt (0..15)")
E("  s_lshr_b32 s46, s50, 1")
E("  s_lshl_b32 s46, s46, 2")
E("  s_lshr_b32 s52, s51, 3")
E("  s_add_u32 s46, s46, s52               ; nt (0..15)")
E("  s_lshl_b32 s47, s50, 2")
E("  s_and_b32 s52, s51, 3")
E("  s_add_u32 s47, s47, s52               ; mt2 (0..31)")
E("  s_lshr_b32 s48, s51, 2                ; nt2 (0..7)")
E("  v_lshrrev_b32 v1, 6, v0")
E("  v_and_b32 v2, 63, v0                  ; lane")
E("  v_readfirstlane_b32 s44, v1")
E("  s_lshl_b32 s52, s2, 3")
E("  s_add_u32 s52, s52, s44")
E("  s_mul_i32 s52, s52, 768")
E("  v_lshlrev_b32 v9, 7, v2")
E("  v_add_u32 v9, s52, v9")
E("  v_cmp_gt_u32 vcc, 6, v2")
E("  v_mov_b32 v8, 0x40000000")
E("  v_lshrrev_b32 v3, 3, v2               ; lane>>3")
E("  v_cndmask_b32 v9, v8, v9, vcc")
E("  v_lshrrev_b32 v4, 4, v2               ; g = lane>>4")
E("  v_and_b32 v5, 7, v2                   ; lane&7")
E("  s_lshl_b32 s52, s45, 7                ; mt*128")
E("  s_lshl_b32 s53, s44, 4                ; 16w")
E("  s_add_u32 s52, s52, s53")
E("  v_add_u32 v6, s52, v3")
E("  v_lshlrev_b32 v6, 10, v6")
E("  v_xor_b32 v7, v5, v4                  ; j (i=0)")
E("  v_lshl_add_u32 v10, v7, 4, v6         ; voff x0")
E("  v_xor_b32 v7, 4, v7")
E("  v_lshl_add_u32 v11, v7, 4, v6")
E("  v_add_u32 v11, 7168, v11")
E("  s_and_b32 s53, s44, 3")
E("  s_mul_i32 s53, s53, 192")
E("  s_mul_i32 s54, s46, 192")
for i in range(3):
    E(f"  v_add_u32 v6, s53, v2")
    if i:
        E(f"  v_add_u32 v6, {64*i}, v6")
    E(f"  v_mul_u32_u24 v7, 0xaaab, v6")
    E(f"  v_lshrrev_b32 v7, 19, v7              ; q = U/12")
    E(f"  v_mul_u32_u24 v8, 12, v7")
    E(f"  v_sub_u32 v8, v6, v8                  ; j' = U%12")
    E(f"  v_and_b32 v19, 4, v7")
    E(f"  v_lshrrev_b32 v15, 1, v19")
    E(f"  v_xor_b32 v8, v8, v15                 ; j")
    E(f"  v_lshlrev_b32 v19, 1, v19")
    E(f"  v_and_b32 v15, 8, v7")
    E(f"  v_lshrrev_b32 v15, 1, v15")
    E(f"  v_and_b32 v7, 0x33, v7")
    E(f"  v_or3_b32 v7, v7, v19, v15            ; k")
    E(f"  v_mul_u32_u24 v7, 2752, v7")
    E(f"  v_lshl_add_u32 v7, v8, 4, v7")
    E(f"  v_add_u32 v{12+i}, s54, v7")
    if i:
        E(f"  v_subrev_u32 v{12+i}, {1024*i}, v{12+i}")
E("  s_and_b32 s55, s46, 3")
E("  s_lshl_b32 s55, s55, 1")
E("  s_and_b32 s52, s45, 7")
E("  s_add_u32 s55, s55, s52")
E("  s_sub_u32 s52, s55, 7")
E("  s_cmp_ge_u32 s55, 7")
E("  s_cselect_b32 s55, s52, s55")
if NOROT:
    E("  s_mov_b32 s55, 0")
E("  s_lshl_b32 s56, s44, 11               ; x m0 base 2048w")
E("  s_mul_i32 s57, s44, 3072")
E("  s_add_u32 s57, s57, 16384             ; W m0 base")
E("  s_waitcnt lgkmcnt(0)")
srd(20, 4, 5, X_BYTES)
E("  s_cmp_lt_u32 s44, 4")
E("  s_cselect_b32 s24, s6, s8")
E("  s_cselect_b32 s25, s7, s9")
E("  s_and_b32 s25, s25, 0xffff")
E(f"  s_mov_b32 s26, {W_BYTES}")
E("  s_mov_b32 s27, 0x20000")
srd(28, 10, 11, WD_BYTES)
E("  buffer_load_dword v31, v9, s[28:31], 0 offen")
E("  s_cmp_ge_u32 s46, 15")
E("  s_cbranch_scc1 L_skip_issue0")

def issue_list(slot, sx, sw):
    g = []
    g.append([f"  s_add_u32 m0, s56, {slot}", "  s_nop 0", f"  buffer_load_dwordx4 v10, s[20:23], {sx} offen lds"])
    g.append([f"  buffer_load_dwordx4 v11, s[20:23], {sx} offen offset:1024 lds"])
    g.append([f"  s_add_u32 m0, s57, {slot}", "  s_nop 0", f"  buffer_load_dwordx4 v12, s[24:27], {sw} offen lds"])
    g.append([f"  buffer_load_dwordx4 v13, s[24:27], {sw} offen offset:1024 lds"])
    g.append([f"  buffer_load_dwordx4 v14, s[24:27], {sw} offen offset:2048 lds"])
    return g
def next_soff():
    return ["  s_lshl_b32 s58, s55, 7",
            "  s_add_u32 s58, s58, 128",
            "  s_mul_i32 s59, s55, 176128",
            "  s_add_u32 s59, s59, 176128",
            "  s_add_u32 s55, s55, 1",
            "  s_cmp_eq_u32 s55, 7",
            "  s_cselect_b32 s55, 0, s55"]
for g in issue_list(0, "0", "0"):
    for l in g: E(l)
for st in (1, 2):
    for l in next_soff(): E(l)
    for g in issue_list(st*40960, "s58", "s59"):
        for l in g: E(l)
E("L_skip_issue0:")
srd(32, 16, 17, WS_BYTES)
srd(36, 12, 13, OUT_BYTES)
srd(40, 14, 15, 256)
E("  s_add_u32 s52, s2, s44")
E("  s_cmp_lg_u32 s52, 0")
E("  s_cbranch_scc1 L_notok")
E("  s_memrealtime s[52:53]")
E("  v_mov_b32 v1, 0")
E("  s_waitcnt lgkmcnt(0)")
E("  s_or_b32 s52, s52, 1")
E("  v_mov_b32 v8, s52")
E("  s_mov_b64 exec, 1")
E("  buffer_store_dword v8, v1, s[40:43], 0 offen sc1")
E("  s_mov_b64 exec, -1")
E("L_notok:")
E("  v_lshlrev_b32 v6, 10, v3              ; (lane>>3)*1024")
E("  v_lshlrev_b32 v7, 1, v4")
E("  v_xor_b32 v7, v7, v5")
E("  v_lshl_add_u32 v6, v7, 4, v6")
E("  s_lshl_b32 s49, s48, 7                ; nt2*128")
E("  v_add_u32 v15, s49, v6")
E("  s_mul_i32 s52, s44, 5")
E("  s_lshl_b32 s65, s52, 10")
for j in range(5):
    E(f"  s_add_u32 s53, s52, {j}")
    E("  s_lshr_b32 s54, s53, 2")
    E("  s_lshl_b32 s54, s54, 17")
    E("  s_and_b32 s53, s53, 3")
    E("  s_lshl_b32 s53, s53, 13")
    E(f"  s_add_u32 s{60+j}, s53, s54")
def wd_issue(kg):
    g = []
    for j in range(5):
        g.append([f"  s_add_u32 m0, s65, {kg*40960 + j*1024}",
                  f"  s_add_u32 s58, s{60+j}, {kg*32768}",
                  "  buffer_load_dwordx4 v15, s[28:31], s58 offen lds"])
    return g
E("  s_cmp_ge_u32 s46, 15")
E("  s_cbranch_scc1 L_idle1")
E("  s_lshr_b32 s66, s44, 1                ; wm")
E("  s_and_b32 s67, s44, 1                 ; wn")
E("  v_and_b32 v6, 15, v2")
E("  v_lshlrev_b32 v6, 7, v6")
E("  s_lshl_b32 s52, s66, 12")
E("  v_add_u32 v6, s52, v6")
E("  v_bfe_u32 v7, v2, 1, 3")
E("  v_xor_b32 v7, v7, v4")
E("  v_lshl_add_u32 v16, v7, 4, v6         ; xa0")
E("  v_xor_b32 v17, 64, v16                ; xa1")
E("  v_add_u32 v18, 81920, v16")
E("  v_add_u32 v19, 81920, v17")
E("  v_bfe_u32 v6, v2, 2, 2                ; r")
E("  v_bfe_u32 v7, v2, 4, 1                ; g&1")
E("  v_lshl_add_u32 v6, v7, 2, v6")
E("  v_lshrrev_b32 v8, 5, v2")
E("  v_lshl_add_u32 v6, v8, 4, v6")
E("  v_mul_u32_u24 v6, 192, v6")
E("  v_and_b32 v8, 3, v2")
E("  v_lshl_add_u32 v6, v8, 3, v6")
E("  v_add_u32 v6, 16384, v6               ; lanepart")
E("  v_lshl_add_u32 v20, v7, 5, v6         ; E = lanepart + (g&1)*32")
E("  v_xor_b32 v7, 1, v7")
E("  v_lshl_add_u32 v21, v7, 5, v6         ; O")
E("  s_cmp_eq_u32 s67, 1")
E("  s_cselect_b64 vcc, -1, 0")
E("  s_lshl_b32 s52, s67, 7")
E("  v_cndmask_b32 v22, v20, v21, vcc")
E("  v_add_u32 v22, 64, v22                ; A2")
E("  v_add_u32 v20, s52, v20               ; A0")
E("  v_add_u32 v21, s52, v21               ; A1")
for i in range(3):
    E(f"  v_add_u32 v{23+i}, 81920, v{20+i}")
for r in range(96, 144):
    E(f"  v_mov_b32 v{r}, 0")

P, Q = 32, 64
def reads(B, slot, ks):
    hi = slot >= 2
    so = (slot & 1) * 40960
    xa = (18 if hi else 16) + ks
    wa = 23 if hi else 20
    r_ = []
    for mb in range(2):
        r_.append([f"  ds_read_b128 v[{B+4*mb}:{B+4*mb+3}], v{xa} offset:{so + mb*2048}"])
    for gu in range(2):
        for i in range(3):
            for jj in range(2):
                r = B + 8 + gu*12 + i*4 + jj*2
                off = so + jj*1536 + ks*6144 + gu*12288
                r_.append([f"  ds_read_b64_tr_b16 v[{r}:{r+1}], v{wa+i} offset:{off}"])
    return r_
def mfmas(B):
    m = []
    for gu in range(2):
        for i in range(3):
            for mb in range(2):
                a = B + 8 + gu*12 + i*4
                b = B + 4*mb
                c = 96 + gu*24 + (mb*3+i)*4
                m.append(f"  v_mfma_f32_16x16x32_bf16 v[{c}:{c+3}], v[{a}:{a+3}], v[{b}:{b+3}], v[{c}:{c+3}]")
    return m

stamp()
E("  s_waitcnt vmcnt(10)")
E("  s_barrier")
stamp()
for g in reads(P, 0, 0):
    for l in g: E(l)
E("  s_waitcnt lgkmcnt(0)")
interleave(mfmas(P), reads(Q, 0, 1), [2]*7)
for i in range(7):
    E("  s_waitcnt vmcnt(5) lgkmcnt(0)")
    E("  s_barrier")
    if i <= 4:
        iss = [next_soff()] + issue_list(((i+3) & 3)*40960, "s58", "s59")
    else:
        iss = [[]] + wd_issue(i-5)
    interleave(mfmas(Q), reads(P, (i+1) & 3, 0) + iss, [2]*7 + [2, 1, 1, 1, 1])
    E("  s_waitcnt lgkmcnt(0)")
    interleave(mfmas(P), reads(Q, (i+1) & 3, 1), [2]*7)
E("  s_waitcnt lgkmcnt(0)")
E("  s_barrier")
w3 = wd_issue(3)
interleave(mfmas(Q), wd_issue(2) + [w3[0]] + [["  s_cmp_eq_u32 s44, 7", "  s_cbranch_scc1 L_w7skip"] + w3[1] + w3[2] + w3[3] + w3[4] + ["L_w7skip:"]], [1]*7)
stamp()
E("  v_mov_b32 v1, 0")
E("  s_cmp_lg_u32 s44, 0")
E("  s_cbranch_scc1 L_notokld")
E("  buffer_load_dword v30, v1, s[40:43], 0 offen sc1")
E("L_notokld:")
E("  s_lshl_b32 s52, s45, 3")
E("  s_lshl_b32 s53, s66, 1")
E("  s_add_u32 s52, s52, s53")
E("  s_mul_i32 s52, s52, 43")
E("  s_mul_i32 s53, s46, 3")
E("  s_add_u32 s52, s52, s53")
E("  s_lshl_b32 s52, s52, 10")
E("  s_lshl_b32 s53, s67, 11")
E("  s_add_u32 s53, s53, s52")
E("  s_add_u32 s54, s52, 1024")
E("  v_lshlrev_b32 v28, 4, v2              ; lane*16")
E("  s_lshl_b32 s52, s67, 3")
E("  v_add_u32 v29, s52, v28")
E("  s_mov_b32 s68, 0xbfb8aa3b             ; -log2(e)")
E("  s_mov_b32 s69, 0xbfb8aa3b")
E("  s_mov_b32 s50, 1.0")
E("  s_mov_b32 s51, 1.0")
def silu(g, u, t, d):
    E(f"  v_pk_mul_f32 v[{t}:{t+1}], v[{g}:{g+1}], s[68:69]")
    E(f"  v_pk_mul_f32 v[{t+2}:{t+3}], v[{g+2}:{g+3}], s[68:69]")
    for e in range(4):
        E(f"  v_exp_f32 v{t+e}, v{t+e}")
    E(f"  v_pk_mul_f32 v[{t+4}:{t+5}], v[{g}:{g+1}], v[{u}:{u+1}]")
    E(f"  v_pk_mul_f32 v[{t+6}:{t+7}], v[{g+2}:{g+3}], v[{u+2}:{u+3}]")
    E(f"  v_pk_add_f32 v[{t}:{t+1}], v[{t}:{t+1}], s[50:51]")
    E(f"  v_pk_add_f32 v[{t+2}:{t+3}], v[{t+2}:{t+3}], s[50:51]")
    for e in range(4):
        E(f"  v_rcp_f32 v{t+e}, v{t+e}")
    E("  s_nop 0")
    E(f"  v_pk_mul_f32 v[{t+4}:{t+5}], v[{t+4}:{t+5}], v[{t}:{t+1}]")
    E(f"  v_pk_mul_f32 v[{t+6}:{t+7}], v[{t+6}:{t+7}], v[{t+2}:{t+3}]")
    E(f"  v_cvt_pk_bf16_f32 v{d}, v{t+4}, v{t+5}")
    E(f"  v_cvt_pk_bf16_f32 v{d+1}, v{t+6}, v{t+7}")
E("  s_lshl_b32 s52, s44, 9")
E("  s_add_u32 s52, s52, 159744")
E("  v_lshlrev_b32 v27, 3, v2")
E("  v_add_u32 v27, s52, v27")
E("  v_xor_b32 v26, 512, v27")
E("  s_cmp_eq_u32 s67, 1")
E("  s_cselect_b64 s[58:59], -1, 0")
E("  s_cmp_eq_u32 s46, 14")
E("  s_cselect_b32 s57, s67, 0")
for mb in range(2):
    silu(96 + (mb*3+2)*4, 120 + (mb*3+2)*4, 64 + mb*8, 88 + mb*2)
E("  v_cndmask_b32 v92, v90, v88, s[58:59]")
E("  v_cndmask_b32 v93, v91, v89, s[58:59]")
E("  ds_write_b64 v27, v[92:93]")
for mb in range(2):
    d = 80 + mb*4
    for i in range(2):
        silu(96 + (mb*3+i)*4, 120 + (mb*3+i)*4, 32 + (mb*2+i)*8, d + 2*i)
    E("  s_cmp_eq_u32 s57, 1")
    E(f"  s_cbranch_scc1 L_nopair{mb}")
    E(f"  buffer_store_dwordx4 v[{d}:{d+3}], v28, s[32:35], s53 offen sc1")
    E(f"L_nopair{mb}:")
    if mb == 0:
        E("  s_add_u32 s53, s53, 44032")
        E("  s_waitcnt lgkmcnt(0)")
        E("  s_barrier")
        E("  ds_read_b64 v[92:93], v26")
E("  s_mul_i32 s52, s67, 44032")
E("  s_add_u32 s54, s54, s52")
E("  s_waitcnt lgkmcnt(0)")
E("  v_cndmask_b32 v64, v88, v92, s[58:59]")
E("  v_cndmask_b32 v65, v89, v93, s[58:59]")
E("  v_cndmask_b32 v66, v92, v90, s[58:59]")
E("  v_cndmask_b32 v67, v93, v91, s[58:59]")
E("  s_cmp_eq_u32 s46, 14")
E("  s_cbranch_scc1 L_st_done")
E("  buffer_store_dwordx4 v[64:67], v28, s[32:35], s54 offen sc1")
E("L_st_done:")
E("  s_branch L_join")
E("L_idle1:")
E("  v_mov_b32 v1, 0")
E("  v_lshlrev_b32 v28, 4, v2              ; lane*16")
E("  buffer_load_dword v30, v1, s[40:43], 0 offen sc1")
for kg in range(3):
    for g in wd_issue(kg):
        for l in g: E(l)
for l in w3[0]: E(l)
E("  s_cmp_eq_u32 s44, 7")
E("  s_cbranch_scc1 L_join")
for g in w3[1:]:
    for l in g: E(l)
E("L_join:")
stamp()
E("  s_lshr_b32 s66, s44, 1                ; kg")
E("  s_and_b32 s67, s44, 1                 ; mh")
E("  s_mul_i32 s52, s66, 40960")
E("  v_lshrrev_b32 v5, 2, v2")
E("  v_lshlrev_b32 v5, 7, v5")
E("  v_and_b32 v6, 3, v2")
E("  v_lshl_add_u32 v5, v6, 3, v5")
E("  v_add_u32 v5, s52, v5")
E("  v_bfe_u32 v6, v2, 3, 2                ; y")
for cb in range(4):
    E(f"  v_xor_b32 v7, {cb}, v6")
    E(f"  v_lshl_add_u32 v{16+cb}, v7, 5, v5")
E("  v_add_u32 v29, 44032, v28")
E("  s_lshl_b32 s53, s47, 2")
E("  s_lshl_b32 s54, s67, 1")
E("  s_add_u32 s53, s53, s54")
E("  s_mul_i32 s53, s53, 43")
E("  s_add_u32 s53, s53, s66")
E("  s_lshl_b32 s53, s53, 10               ; h soffset (t=0)")
E("  s_add_u32 s54, s66, 40")
E("  s_lshl_b32 s54, s54, 15")
E("  s_lshl_b32 s59, s67, 14")
E("  s_add_u32 s54, s54, s59")
E("  s_lshl_b32 s59, s67, 11")
E("  s_add_u32 s59, s59, s52")
for r in range(192, 224):
    E(f"  v_mov_b32 v{r}, 0")
E("  s_waitcnt vmcnt(0)")
E("  s_barrier                             ; B2")
stamp()
WP, WQ = 160, 176
def reads2(B, t):
    r_ = []
    so = (t % 10) * 4096
    for cb in range(4):
        for jj in range(2):
            r = B + cb*4 + jj*2
            r_.append([f"  ds_read_b64_tr_b16 v[{r}:{r+1}], v{16+cb} offset:{so + jj*2048}"])
    return r_
def mfmas2(B, t):
    m = []
    for cb in range(4):
        for mb in range(2):
            c = 192 + (mb*4+cb)*4
            a = B + cb*4
            b = 64 + (t*2+mb)*4
            m.append(f"  v_mfma_f32_16x16x32_bf16 v[{c}:{c+3}], v[{a}:{a+3}], v[{b}:{b+3}], v[{c}:{c+3}]")
    return m
for g in reads2(WP, 0):
    for l in g: E(l)
E("  s_cmp_lg_u32 s44, 7")
E("  s_cbranch_scc1 L_w7done")
for g in w3[1:]:
    for l in g: E(l)
E("L_w7done:")
E("  s_cmp_lg_u32 s44, 0")
E("  s_cbranch_scc1 L_nopoll")
E("  s_mov_b32 s58, 0")
E("L_tok:")
E("  v_readfirstlane_b32 s55, v30")
E("  s_cmp_lg_u32 s55, 0")
E("  s_cbranch_scc1 L_tokok")
E("  s_sleep 2")
E("  buffer_load_dword v30, v1, s[40:43], 0 offen sc1")
E("  s_waitcnt vmcnt(0)")
E("  s_add_u32 s58, s58, 1")
E("  s_cmp_lt_u32 s58, 0x100000")
E("  s_cbranch_scc1 L_tok")
E("L_tokok:")
E("  s_cmp_ge_u32 s46, 15")
E("  s_cbranch_scc1 L_noflag")
E("  s_lshl_b32 s56, s45, 8")
E("  s_lshl_b32 s57, s46, 2")
E("  s_add_u32 s56, s56, s57")
E(f"  s_add_u32 s56, s56, {FLAG_OFF}")
E("  s_mov_b64 exec, 1")
E("  buffer_store_dword v30, v1, s[32:35], s56 offen sc1")
E("  s_mov_b64 exec, -1")
E("L_noflag:")
E("  s_lshr_b32 s56, s47, 1")
E("  s_lshl_b32 s56, s56, 8")
E(f"  s_add_u32 s56, s56, {FLAG_OFF}")
E("  v_lshlrev_b32 v8, 2, v2")
E("  s_mov_b64 exec, 0x7fff")
E("  s_mov_b32 s58, 0")
E("L_poll:")
E("  buffer_load_dword v9, v8, s[32:35], s56 offen sc1")
E("  s_waitcnt vmcnt(0)")
E("  v_cmp_ne_u32 vcc, s55, v9")
E("  s_cmp_eq_u64 vcc, 0")
E("  s_cbranch_scc1 L_pollok")
E("  s_sleep 1")
E("  s_add_u32 s58, s58, 1")
E("  s_cmp_lt_u32 s58, 0x100000")
E("  s_cbranch_scc1 L_poll")
E("L_pollok:")
E("  s_mov_b64 exec, -1")
E("L_nopoll:")
E("  s_waitcnt vmcnt(0) lgkmcnt(0)")
E("  s_barrier")
stamp()
E("  s_mov_b32 m0, s59")
E("  s_add_u32 s58, s54, 7168")
E("  buffer_load_dwordx4 v15, s[28:31], s54 offen lds")
E("  buffer_load_dwordx4 v15, s[28:31], s58 offen offset:1024 lds")
E("  s_cmp_eq_u32 s66, 3")
E(f"  s_cselect_b32 s58, {OOB}, 0")
for t in range(11):
    if t == 10:
        E("  s_add_u32 s53, s53, s58")
    for mb in range(2):
        r = 64 + (t*2+mb)*4
        E(f"  buffer_load_dwordx4 v[{r}:{r+3}], v{28+mb}, s[32:35], s53 offen sc1")
    if t < 10:
        E("  s_add_u32 s53, s53, 4096")
for t in range(10):
    A, B = (WP, WQ) if t % 2 == 0 else (WQ, WP)
    E(f"  s_waitcnt vmcnt({2*(10-t)}) lgkmcnt(0)")
    if t < 9:
        interleave(mfmas2(A, t), reads2(B, t+1), [2]*4)
    else:
        E("  s_barrier")
        interleave(mfmas2(A, t), reads2(B, 10), [2]*4)
E("  s_cmp_eq_u32 s66, 3")
E("  s_cbranch_scc1 L_no10")
E("  s_waitcnt vmcnt(0) lgkmcnt(0)")
for m in mfmas2(WP, 10): E(m)
E("L_no10:")
stamp()
E("  s_lshl_b32 s53, s67, 13")
E("  s_add_u32 s53, s53, s52")
E("  s_add_u32 s53, s53, 4096")
E("  v_add_u32 v5, s53, v28")
E("  s_lshr_b32 s54, s66, 1                ; mh'")
E("  s_lshl_b32 s54, s54, 13")
E("  s_and_b32 s55, s66, 1")
E("  s_lshl_b32 s55, s55, 12")
E("  s_add_u32 s54, s54, s55")
E("  s_lshl_b32 s55, s67, 11")
E("  s_add_u32 s54, s54, s55")
E("  s_add_u32 s54, s54, 4096")
E("  v_add_u32 v6, s54, v28")
E("  v_add_u32 v7, 81920, v6")
E("  s_waitcnt lgkmcnt(0)")
for t in range(8):
    c = 192 + t*4
    E(f"  ds_write_b128 v5, v[{c}:{c+3}] offset:{t*1024}")
E("  s_lshl_b32 s53, s47, 6")
E("  s_lshl_b32 s54, s66, 4")
E("  s_add_u32 s53, s53, s54")
E("  v_and_b32 v8, 15, v2")
E("  v_add_u32 v8, s53, v8")
E("  v_lshlrev_b32 v8, 10, v8")
E("  s_lshl_b32 s54, s67, 6")
E("  s_add_u32 s54, s54, s49")
E("  v_add_u32 v8, s54, v8")
E("  v_and_b32 v9, 1, v4")
E("  v_lshl_add_u32 v8, v9, 5, v8")
E("  v_lshrrev_b32 v9, 1, v4")
E("  v_lshl_add_u32 v8, v9, 4, v8")
E("  s_waitcnt lgkmcnt(0)")
E("  s_barrier                             ; B5")
for kg in range(4):
    for h in range(2):
        r = 32 + (kg*2+h)*4
        E(f"  ds_read_b128 v[{r}:{r+3}], v{6 if kg < 2 else 7} offset:{(kg&1)*40960 + h*1024}")
E("  s_waitcnt lgkmcnt(0)")
for h in range(2):
    for q in range(2):
        r0 = 32 + h*4 + q*2
        E(f"  v_pk_add_f32 v[{r0}:{r0+1}], v[{r0}:{r0+1}], v[{r0+8}:{r0+9}]")
        E(f"  v_pk_add_f32 v[{r0+16}:{r0+17}], v[{r0+16}:{r0+17}], v[{r0+24}:{r0+25}]")
        E(f"  v_pk_add_f32 v[{r0}:{r0+1}], v[{r0}:{r0+1}], v[{r0+16}:{r0+17}]")
for h in range(2):
    r0 = 32 + h*4
    E(f"  v_cvt_pk_bf16_f32 v{64+2*h}, v{r0}, v{r0+1}")
    E(f"  v_cvt_pk_bf16_f32 v{65+2*h}, v{r0+2}, v{r0+3}")
E("  s_nop 1")
E("  v_permlane16_swap_b32 v64, v66")
E("  v_permlane16_swap_b32 v65, v67")
E("  buffer_store_dwordx4 v[64:67], v8, s[36:39], 0 offen")
stamp()
stamp_flush()
E("L_done:")
E("  s_endpgm")
E('.section .rodata,"a"')
E(".p2align 6")
E(f".amdhsa_kernel {K}")
E("  .amdhsa_next_free_vgpr 224")
E("  .amdhsa_next_free_sgpr 100")
E("  .amdhsa_accum_offset 224")
E("  .amdhsa_group_segment_fixed_size 0")
E("  .amdhsa_kernarg_size 56")
E("  .amdhsa_user_sgpr_count 2")
E("  .amdhsa_user_sgpr_kernarg_segment_ptr 1")
E("  .amdhsa_system_sgpr_workgroup_id_x 1")
E(".end_amdhsa_kernel")
path = sys.argv[1] if len(sys.argv) > 1 else "standalone__swiglu_ffn__prompt.s"
open(path, "w").write(HDR + "\n".join(out) + "\n")
```

```python
import sys, os
HDR = """; Kernarg layout for this problem (56 bytes, ptrs only, base s[0:1]):
; @launch grid=(256,1,1) block=(768,1,1) lds=163840
.amdgcn_target "amdgcn-amd-amdhsa--gfx950"
.text
"""
STAMP = int(os.environ.get("STAMP", "0"))
NEX = int(os.environ.get("NEX", "4"))
out = []
def E(s=""):
    out.append(s)
NST = [0]
def stamp(drain=False):
    if STAMP:
        n = NST[0]; NST[0] += 1
        E(f"  s_memrealtime s[{70+2*n}:{71+2*n}]")
        if n == 0:
            E("  s_memtime s[96:97]")
        if drain:
            E("  s_waitcnt lgkmcnt(0)")
def stamp_flush():
    if not STAMP: return
    n = NST[0]
    assert n <= 12
    E("  s_waitcnt vmcnt(0) lgkmcnt(0)")
    E(f"  s_memrealtime s[{70+2*n}:{71+2*n}]")
    E("  s_memtime s[98:99]")
    E("  s_waitcnt lgkmcnt(0)")
    E("  s_sub_u32 s98, s98, s96")
    E("  s_cmp_lg_u32 s44, 0")
    E(f"  s_cbranch_scc1 Lst_skip")
    E("  s_lshl_b32 s58, s2, 7")
    E("  s_add_u32 s58, s58, 0x800000")
    E("  v_mov_b32 v1, s58")
    E("  s_mov_b64 exec, 1")
    for i in range(n+1):
        E(f"  v_mov_b32 v2, s{70+2*i}")
        E(f"  v_mov_b32 v3, s{71+2*i}")
        E(f"  global_store_dwordx2 v1, v[2:3], s[16:17] offset:{8*i}")
        E("  s_nop 1")
    E("  v_mov_b32 v2, s98")
    E("  v_mov_b32 v3, 0")
    E("  global_store_dwordx2 v1, v[2:3], s[16:17] offset:120")
    E(f"Lst_skip:")

X_BYTES = 2048*1024
W_BYTES = 512*2752
WD_BYTES = 1376*1024
WS_BYTES = 8 << 20
FLAG_OFF = 6 << 20
OUT_BYTES = 2048*1024
OOB = 0x40000000
SLOT = 32768
def srd(d, lo, hi, nbytes):
    E(f"  s_mov_b32 s{d}, s{lo}")
    E(f"  s_and_b32 s{d+1}, s{hi}, 0xffff")
    E(f"  s_mov_b32 s{d+2}, {nbytes}")
    E(f"  s_mov_b32 s{d+3}, 0x20000")

K = "standalone__swiglu_ffn__prompt_kernel"
E(f".globl {K}")
E(".p2align 8")
E(f".type {K},@function")
E(f"{K}:")
E("  s_cmp_ge_u32 s2, 256")
E("  s_cbranch_scc1 L_done")
stamp()
E("  s_load_dwordx8 s[4:11], s[0:1], 0")
E("  s_load_dwordx4 s[12:15], s[0:1], 32")
E("  s_load_dwordx2 s[16:17], s[0:1], 48   ; ws")
E("  s_and_b32 s50, s2, 7")
E("  s_lshr_b32 s51, s2, 3                 ; idx")
E("  s_and_b32 s45, s50, 1")
E("  s_lshl_b32 s45, s45, 3")
E("  s_and_b32 s52, s51, 7")
E("  s_add_u32 s45, s45, s52               ; mt (0..15)")
E("  s_lshr_b32 s46, s50, 1")
E("  s_lshl_b32 s46, s46, 2")
E("  s_lshr_b32 s52, s51, 3")
E("  s_add_u32 s46, s46, s52               ; nt (0..15)")
E("  s_lshl_b32 s47, s50, 2")
E("  s_and_b32 s52, s51, 3")
E("  s_add_u32 s47, s47, s52               ; mt2 (0..31)")
E("  s_lshr_b32 s48, s51, 2                ; nt2 (0..7)")
E("  s_lshl_b32 s49, s48, 7                ; nt2*128")
E("  v_lshrrev_b32 v1, 6, v0")
E("  v_and_b32 v2, 63, v0                  ; lane")
E("  v_readfirstlane_b32 s44, v1")
E("  v_lshrrev_b32 v3, 3, v2               ; lane>>3")
E("  v_lshrrev_b32 v4, 4, v2               ; g = lane>>4")
E("  v_and_b32 v5, 7, v2                   ; lane&7")
E("  s_cmp_ge_u32 s44, 8")
E("  s_cbranch_scc1 L_loader")

E("  s_lshr_b32 s66, s44, 1")
E("  s_and_b32 s67, s44, 1")
E("  v_lshlrev_b32 v28, 4, v2              ; lane*16")
E("  v_and_b32 v30, 15, v2")
E("  v_lshlrev_b32 v30, 7, v30             ; (l&15)*128")
E("  v_bfe_u32 v31, v2, 1, 3")
E("  v_xor_b32 v31, v31, v4")
E("  v_lshl_add_u32 v30, v31, 4, v30")
E("  s_lshl_b32 s52, s44, 11")
E("  v_add_u32 v5, s52, v30")
E("  v_xor_b32 v6, 64, v5")
E("  v_xor_b32 v7, 0x800, v5")
E("  v_xor_b32 v8, 0x800, v6")
for i in range(4):
    E(f"  v_add_u32 v{9+i}, 0x10000, v{5+i}")
E("  v_bfe_u32 v30, v2, 2, 2               ; r")
E("  v_bfe_u32 v31, v2, 4, 1               ; g&1")
E("  v_lshl_add_u32 v30, v31, 2, v30")
E("  v_lshrrev_b32 v31, 5, v2")
E("  v_lshl_add_u32 v30, v31, 4, v30")
E("  v_lshlrev_b32 v30, 7, v30")
E("  v_and_b32 v31, 3, v2")
E("  v_lshl_add_u32 v30, v31, 3, v30       ; lanepart")
E("  v_bfe_u32 v31, v2, 3, 2               ; y")
for cb in range(4):
    E(f"  v_xor_b32 v25, {cb}, v31")
    E(f"  v_lshl_add_u32 v{17+cb}, v25, 5, v30")
    E(f"  v_add_u32 v{21+cb}, 0x20000, v{17+cb}")
E("  s_lshl_b32 s52, s67, 1")
E("  v_xor_b32 v25, s52, v31")
E("  v_lshl_add_u32 v13, v25, 5, v30")
E("  v_add_u32 v13, 16384, v13")
E("  v_xor_b32 v14, 32, v13                ; pa1")
E("  v_add_u32 v15, 0x10000, v13")
E("  v_add_u32 v16, 0x10000, v14")
for r in range(136, 168):
    E(f"  v_mov_b32 v{r}, 0")
E("  s_lshl_b32 s52, s45, 3                ; mt*8")
E("  s_add_u32 s53, s52, s44")
E("  s_xor_b32 s54, s53, 1")
E("  s_mul_i32 s53, s53, 43")
E("  s_mul_i32 s54, s54, 43")
E("  s_mul_i32 s52, s46, 3")
E("  s_add_u32 s53, s53, s52")
E("  s_add_u32 s54, s54, s52")
E("  s_add_u32 s55, s53, 2")
E("  s_lshl_b32 s55, s55, 10")
E("  s_add_u32 s53, s53, s67")
E("  s_lshl_b32 s53, s53, 10")
E("  s_add_u32 s54, s54, s67")
E("  s_lshl_b32 s54, s54, 10")
E("  s_mov_b32 s68, 0xbfb8aa3b             ; -log2(e)")
E("  s_mov_b32 s69, 0xbfb8aa3b")
E("  s_mov_b32 s50, 1.0")
E("  s_mov_b32 s51, 1.0")
E("  s_cmp_eq_u32 s46, 14")
E("  s_cselect_b32 s57, s67, 0")
E("  s_waitcnt lgkmcnt(0)")
srd(32, 16, 17, WS_BYTES)
srd(36, 12, 13, OUT_BYTES)
E("  s_cmp_ge_u32 s46, 15")
E("  s_cbranch_scc1 L_join")

P, Q = 32, 52
BANK = 72
ACCA = 136
ACCB = [32, 52, 8, 12]
def readsA(B, stage, ks):
    slot = stage & 3
    hi = slot >= 2
    so = (slot & 1) * SLOT
    xo = (9 if hi else 5) + ks
    pa = 15 if hi else 13
    bk = BANK + (stage*2 + ks)*4
    r_ = [f"  ds_read_b128 v[{bk}:{bk+3}], v{xo} offset:{so}",
          f"  ds_read_b128 v[{B}:{B+3}], v{xo+2} offset:{so}"]
    for gu in range(2):
        for i in range(2):
            for jj in range(2):
                r = B + 4 + gu*8 + i*4 + jj*2
                r_.append(f"  ds_read_b64_tr_b16 v[{r}:{r+1}], v{pa+i} offset:{so + jj*1024 + ks*4096 + gu*8192}")
    return r_
def mfmaA(B, stage, ks):
    m = []
    bk = BANK + (stage*2 + ks)*4
    for gu in range(2):
        for i in range(2):
            for ms in range(2):
                a = B + 4 + gu*8 + i*4
                b = bk if ms == 0 else B
                c = ACCA + gu*16 + (ms*2+i)*4
                m.append((f"  v_mfma_f32_16x16x32_bf16 v[{c}:{c+3}], v[{a}:{a+3}], v[{b}:{b+3}], v[{c}:{c+3}]", 2 + 2*(gu*2+i+1)))
    return m
def readsB(B, kk):
    stage, ks = kk >> 1, kk & 1
    pb = 21 if stage < 4 else 17
    so = (stage & 3)*8192
    r_ = []
    for cb in range(4):
        for jj in range(2):
            r = B + 4 + cb*4 + jj*2
            r_.append(f"  ds_read_b64_tr_b16 v[{r}:{r+1}], v{pb+cb} offset:{so + jj*1024 + ks*4096}")
    return r_
def mfmaB(B, kk):
    m = []
    bk = BANK + kk*4
    for cb in range(4):
        a = B + 4 + cb*4
        c = ACCB[cb]
        cin = "0" if kk == 0 else f"v[{c}:{c+3}]"
        m.append((f"  v_mfma_f32_16x16x32_bf16 v[{c}:{c+3}], v[{a}:{a+3}], v[{bk}:{bk+3}], {cin}", 2*(cb+1)))
    return m
EXTRA = []
def block(mf, nprev, rd, nextra=0):
    n = len(mf); ri = 0; last = None
    for j, (m, need) in enumerate(mf):
        allowed = min(15, nprev - need + ri)
        if allowed != last:
            E(f"  s_waitcnt lgkmcnt({allowed})")
            last = allowed
        E(m)
        tgt = -(-len(rd) * (j+1) // n)
        while ri < tgt:
            E(rd[ri]); ri += 1; last = None
        for _ in range(nextra):
            if EXTRA:
                for l in EXTRA.pop(0): E(l)
def silu_lines(g, u, d):
    L = []
    L.append(f"  v_pk_mul_f32 v[{u}:{u+1}], v[{g}:{g+1}], v[{u}:{u+1}]")
    L.append(f"  v_pk_mul_f32 v[{u+2}:{u+3}], v[{g+2}:{g+3}], v[{u+2}:{u+3}]")
    L.append(f"  v_pk_mul_f32 v[{g}:{g+1}], v[{g}:{g+1}], s[68:69]")
    L.append(f"  v_pk_mul_f32 v[{g+2}:{g+3}], v[{g+2}:{g+3}], s[68:69]")
    for e in range(4):
        L.append(f"  v_exp_f32 v{g+e}, v{g+e}")
    L.append(f"  v_pk_add_f32 v[{g}:{g+1}], v[{g}:{g+1}], s[50:51]")
    L.append(f"  v_pk_add_f32 v[{g+2}:{g+3}], v[{g+2}:{g+3}], s[50:51]")
    for e in range(4):
        L.append(f"  v_rcp_f32 v{g+e}, v{g+e}")
    L.append(f"  v_pk_mul_f32 v[{u}:{u+1}], v[{u}:{u+1}], v[{g}:{g+1}]")
    L.append(f"  v_pk_mul_f32 v[{u+2}:{u+3}], v[{u+2}:{u+3}], v[{g+2}:{g+3}]")
    L.append(f"  v_cvt_pk_bf16_f32 v{d}, v{u}, v{u+1}")
    L.append(f"  v_cvt_pk_bf16_f32 v{d+1}, v{u+2}, v{u+3}")
    return L

stamp()
E("  s_barrier")
stamp(True)
r0 = readsA(P, 0, 0)
for l in r0: E(l)
block(mfmaA(P, 0, 0), 10, readsA(Q, 0, 1))
for i in range(7):
    E("  s_barrier")
    block(mfmaA(Q, i, 1), 10, readsA(P, i+1, 0))
    block(mfmaA(P, i+1, 0), 10, readsA(Q, i+1, 1))
E("  s_barrier")
block(mfmaA(Q, 7, 1), 10, readsB(P, 0))
stamp(True)
EXTRA.append(["  s_nop 7"])
for ms in range(2):
    d = ACCA + ms*8
    for k2 in range(2):
        for l in silu_lines(ACCA + (ms*2+k2)*4, ACCA + 16 + (ms*2+k2)*4, d + 2*k2):
            EXTRA.append([l])
    EXTRA.append(["  s_cmp_eq_u32 s57, 1", f"  s_cbranch_scc1 L_nopair{ms}",
                  f"  buffer_store_dwordx4 v[{d}:{d+3}], v28, s[32:35], s{53+ms} offen sc1", f"L_nopair{ms}:"])
for kk in range(16):
    A, B = (P, Q) if kk % 2 == 0 else (Q, P)
    if kk == 2:
        E("  s_barrier")
    if kk == 9:
        E("  s_barrier")
    block(mfmaB(A, kk), 8 if not (STAMP and kk == 0) else 8, readsB(B, kk+1) if kk < 15 else [], NEX)
assert not EXTRA
stamp()
E("  s_waitcnt vmcnt(0)")
E("  s_barrier")
E("  s_nop 4")
for k2 in range(2):
    for l in silu_lines(ACCB[k2], ACCB[2+k2], ACCB[0] + 2*k2): E(l)
E("  s_cmp_eq_u32 s46, 14")
E("  s_cbranch_scc1 L_join")
E(f"  buffer_store_dwordx4 v[{ACCB[0]}:{ACCB[0]+3}], v28, s[32:35], s55 offen sc1")
E("L_join:")
stamp()
E("  s_lshl_b32 s52, s66, 12               ; kg*4096")
E("  v_lshrrev_b32 v5, 2, v2")
E("  v_lshlrev_b32 v5, 7, v5")
E("  v_and_b32 v6, 3, v2")
E("  v_lshl_add_u32 v5, v6, 3, v5")
E("  v_add_u32 v5, s52, v5")
E("  v_bfe_u32 v6, v2, 3, 2                ; y")
for cb in range(4):
    E(f"  v_xor_b32 v7, {cb}, v6")
    E(f"  v_lshl_add_u32 v{16+cb}, v7, 5, v5    ; base t=8,9 (R0)")
    E(f"  v_add_u32 v{20+cb}, 0x8000, v{16+cb}   ; t=0..3,10")
    E(f"  v_add_u32 v{24+cb}, 0x18000, v{16+cb}  ; t=4..7")
E("  v_add_u32 v29, 44032, v28")
E("  s_lshl_b32 s53, s47, 2")
E("  s_lshl_b32 s54, s67, 1")
E("  s_add_u32 s53, s53, s54")
E("  s_mul_i32 s53, s53, 44032")
for t in range(11):
    E(f"  s_add_u32 s54, s66, {4*t}")
    if t < 7:
        E("  s_lshr_b32 s55, s54, 1")
        E("  s_mul_i32 s55, s55, 3")
        E("  s_and_b32 s54, s54, 1")
        E("  s_add_u32 s55, s55, s54")
    elif t == 7:
        E("  s_mul_i32 s55, s54, 3")
        E("  s_sub_u32 s55, s55, 85")
        E("  s_cmp_eq_u32 s54, 28")
        E("  s_cselect_b32 s55, 42, s55")
    else:
        E("  s_mul_i32 s55, s54, 3")
        E("  s_sub_u32 s55, s55, 85")
    E("  s_lshl_b32 s55, s55, 10")
    E(f"  s_add_u32 s{4+t}, s55, s53")
E("  s_cmp_eq_u32 s66, 3")
E(f"  s_cselect_b32 s14, {OOB}, s14")
ACC = 64
for r in range(ACC, ACC+32):
    E(f"  v_mov_b32 v{r}, 0")
E("  s_barrier")
stamp(True)
WP, WQ = 32, 48
def reads2(B, t):
    r_ = []
    if t < 4: base, so = 20, t*16384
    elif t < 8: base, so = 24, (t-4)*16384
    elif t < 10: base, so = 16, (t-8)*16384
    else: base, so = 20, 0
    for cb in range(4):
        for jj in range(2):
            r = B + cb*4 + jj*2
            r_.append(f"  ds_read_b64_tr_b16 v[{r}:{r+1}], v{base+cb} offset:{so + jj*2048}")
    return r_
def hreg(t, mb): return 96 + ((t % 9)*2+mb)*4
def mfmas2(B, t):
    m = []
    for cb in range(4):
        for mb in range(2):
            c = ACC + (mb*4+cb)*4
            a = B + cb*4
            b = hreg(t, mb)
            m.append(f"  v_mfma_f32_16x16x32_bf16 v[{c}:{c+3}], v[{a}:{a+3}], v[{b}:{b+3}], v[{c}:{c+3}]")
    return m
def hload(t):
    for mb in range(2):
        r = hreg(t, mb)
        E(f"  buffer_load_dwordx4 v[{r}:{r+3}], v{28+mb}, s[32:35], s{4+t} offen sc1")
hload(0)
for l in reads2(WP, 0): E(l)
for t in range(1, 7): hload(t)
def step(t, younger, rd):
    A = WP if t % 2 == 0 else WQ
    mf = mfmas2(A, t)
    for j in range(4):
        lg = 6 if rd else 6 - 2*j
        if j == 0:
            E(f"  s_waitcnt vmcnt({younger}) lgkmcnt({lg})")
        else:
            E(f"  s_waitcnt lgkmcnt({lg})")
        for q in range(2):
            E(mf[2*j+q])
            if rd: E(rd[2*j+q])
for t in range(7):
    B = WQ if t % 2 == 0 else WP
    step(t, 2*(6-t), reads2(B, t+1))
    if t == 0:
        E("  s_barrier")
stamp()
E("  s_waitcnt lgkmcnt(0)")
E("  s_barrier")
stamp(True)
for t in range(7, 11): hload(t)
for t in range(7, 10):
    B = WQ if t % 2 == 0 else WP
    step(t, 2*(10-t), reads2(B, t+1))
E("  s_cmp_eq_u32 s66, 3")
E("  s_cbranch_scc1 L_no10")
step(10, 0, None)
E("L_no10:")
stamp()
RED = 49152
E("  s_lshl_b32 s53, s44, 13               ; w*8192")
E(f"  s_add_u32 s53, s53, {RED}")
E("  v_add_u32 v5, s53, v28")
E("  s_lshr_b32 s54, s66, 1                ; mh'")
E("  s_lshl_b32 s54, s54, 13")
E("  s_and_b32 s55, s66, 1")
E("  s_lshl_b32 s55, s55, 12")
E("  s_add_u32 s54, s54, s55")
E("  s_lshl_b32 s55, s67, 11")
E("  s_add_u32 s54, s54, s55")
E(f"  s_add_u32 s54, s54, {RED}")
E("  v_add_u32 v6, s54, v28")
E("  s_waitcnt vmcnt(0) lgkmcnt(0)")
E("  s_nop 2")
for t in range(8):
    c = ACC + t*4
    E(f"  ds_write_b128 v5, v[{c}:{c+3}] offset:{t*1024}")
E("  s_lshl_b32 s53, s47, 6")
E("  s_lshl_b32 s54, s66, 4")
E("  s_add_u32 s53, s53, s54")
E("  v_and_b32 v8, 15, v2")
E("  v_add_u32 v8, s53, v8")
E("  v_lshlrev_b32 v8, 10, v8")
E("  s_lshl_b32 s54, s67, 6")
E("  s_add_u32 s54, s54, s49")
E("  v_add_u32 v8, s54, v8")
E("  v_and_b32 v9, 1, v4")
E("  v_lshl_add_u32 v8, v9, 5, v8")
E("  v_lshrrev_b32 v9, 1, v4")
E("  v_lshl_add_u32 v8, v9, 4, v8")
E("  s_waitcnt lgkmcnt(0)")
E("  s_barrier                             ; B5")
for kg in range(4):
    for h in range(2):
        r = 96 + (kg*2+h)*4
        E(f"  ds_read_b128 v[{r}:{r+3}], v6 offset:{kg*16384 + h*1024}")
E("  s_waitcnt lgkmcnt(0)")
for h in range(2):
    for q in range(2):
        r0 = 96 + h*4 + q*2
        E(f"  v_pk_add_f32 v[{r0}:{r0+1}], v[{r0}:{r0+1}], v[{r0+8}:{r0+9}]")
        E(f"  v_pk_add_f32 v[{r0+16}:{r0+17}], v[{r0+16}:{r0+17}], v[{r0+24}:{r0+25}]")
        E(f"  v_pk_add_f32 v[{r0}:{r0+1}], v[{r0}:{r0+1}], v[{r0+16}:{r0+17}]")
for h in range(2):
    r0 = 96 + h*4
    E(f"  v_cvt_pk_bf16_f32 v{32+2*h}, v{r0}, v{r0+1}")
    E(f"  v_cvt_pk_bf16_f32 v{33+2*h}, v{r0+2}, v{r0+3}")
E("  s_nop 1")
E("  v_permlane16_swap_b32 v32, v34")
E("  v_permlane16_swap_b32 v33, v35")
E("  buffer_store_dwordx4 v[32:35], v8, s[36:39], 0 offen")
stamp_flush()
E("  s_endpgm")

E("L_loader:")
E("  s_sub_u32 s68, s44, 8                 ; L")
E("  s_lshl_b32 s52, s2, 2")
E("  s_add_u32 s52, s52, s68")
E("  s_mul_i32 s52, s52, 1408")
E("  v_lshlrev_b32 v9, 7, v2")
E("  v_add_u32 v9, s52, v9")
E("  v_cmp_gt_u32 vcc, 11, v2")
E("  v_mov_b32 v8, 0x40000000")
E("  s_lshl_b32 s52, s45, 7                ; mt*128")
E("  s_lshl_b32 s53, s68, 5                ; 32L")
E("  v_cndmask_b32 v9, v8, v9, vcc")
E("  s_add_u32 s52, s52, s53")
E("  v_add_u32 v6, s52, v3")
E("  v_lshlrev_b32 v6, 10, v6")
E("  v_xor_b32 v7, v5, v4")
E("  v_lshl_add_u32 v10, v7, 4, v6")
E("  v_xor_b32 v7, 4, v7")
E("  v_lshl_add_u32 v11, v7, 4, v6")
E("  v_add_u32 v12, 14336, v10")
E("  v_add_u32 v13, 21504, v11")
E("  v_add_u32 v11, 7168, v11")
E("  v_lshlrev_b32 v7, 1, v4")
E("  v_xor_b32 v14, v7, v5                 ; j (0..7)")
E("  s_mul_i32 s54, s46, 192               ; nt*192")
E("  v_and_b32 v6, 3, v3")
E("  v_and_b32 v7, 4, v3")
E("  v_lshl_add_u32 v6, v7, 1, v6")
E("  v_mul_u32_u24 v6, 2752, v6")
E("  v_add_u32 v6, s54, v6")
E("  s_and_b32 s53, s68, 1")
E(f"  s_mul_i32 s53, s53, {32*2752}")
E("  v_lshl_add_u32 v7, v14, 4, v6")
E("  v_add_u32 v7, s53, v7")
for i in range(4):
    koff = ((i & 1) << 2) | ((i >> 1) << 4)
    E(f"  v_add_u32 v{16+i}, {koff*2752 - i*1024}, v7")
E("  v_and_b32 v7, 3, v14")
E("  v_lshl_add_u32 v7, v7, 4, v6")
E(f"  s_mul_i32 s53, s68, {16*2752}")
E("  s_add_u32 s53, s53, 128")
E("  v_add_u32 v20, s53, v7")
E(f"  v_add_u32 v21, {4*2752 - 1024}, v20")
E("  v_cmp_gt_u32 s[64:65], 4, v14")
E("  s_and_b32 s55, s46, 3")
E("  s_lshl_b32 s55, s55, 1")
E("  s_and_b32 s52, s45, 7")
E("  s_add_u32 s55, s55, s52")
E("  s_sub_u32 s52, s55, 7")
E("  s_cmp_ge_u32 s55, 7")
E("  s_cselect_b32 s55, s52, s55")
E("  s_mov_b32 s3, s55")
E("  s_lshl_b32 s56, s68, 12               ; x m0 base 4096L")
E("  s_add_u32 s57, s56, 16384")
E("  s_lshl_b32 s69, s68, 11")
E("  s_not_b64 s[66:67], s[64:65]")
E("  s_waitcnt lgkmcnt(0)")
srd(20, 4, 5, X_BYTES)
E("  s_cmp_lt_u32 s68, 2")
E("  s_cselect_b32 s24, s6, s8")
E("  s_cselect_b32 s25, s7, s9")
E("  s_and_b32 s25, s25, 0xffff")
E(f"  s_mov_b32 s26, {W_BYTES}")
E("  s_mov_b32 s27, 0x20000")
srd(28, 10, 11, WD_BYTES)
E("  s_cmp_ge_u32 s46, 15")
E("  s_cbranch_scc1 L_skip_issue0")
def issueA(stage, sx, sw):
    slot = (stage & 3) * SLOT
    E(f"  s_add_u32 m0, s56, {slot}")
    E("  s_nop 0")
    for i in range(4):
        E(f"  buffer_load_dwordx4 v{10+i}, s[20:23], {sx} offen offset:{i*1024} lds")
    E(f"  s_add_u32 m0, s57, {slot}")
    E("  s_nop 0")
    for i in range(4):
        E(f"  buffer_load_dwordx4 v{16+i}, s[24:27], {sw} offen offset:{i*1024} lds")
def next_soff():
    for l in ["  s_lshl_b32 s58, s55, 7", "  s_add_u32 s58, s58, 128", "  s_mul_i32 s59, s55, 176128",
              "  s_add_u32 s59, s59, 176128", "  s_add_u32 s55, s55, 1", "  s_cmp_eq_u32 s55, 7",
              "  s_cselect_b32 s55, 0, s55"]: E(l)
def issueB(stage):
    lds = (131072 if stage < 4 else 0) + (stage & 3)*8192
    if stage == 0:
        E("  s_mov_b32 s59, 0")
    else:
        for l in ["  s_mul_i32 s59, s3, 176128", "  s_add_u32 s59, s59, 176128", "  s_add_u32 s3, s3, 1",
                  "  s_cmp_eq_u32 s3, 7", "  s_cselect_b32 s3, 0, s3"]: E(l)
    E(f"  s_add_u32 m0, s69, {lds}")
    E("  s_mov_b64 exec, s[64:65]")
    for i in range(2):
        E(f"  buffer_load_dwordx4 v{20+i}, s[36:39], s59 offen offset:{i*1024} lds")
    E("  s_mov_b64 exec, s[66:67]")
    for i in range(2):
        E(f"  buffer_load_dwordx4 v{20+i}, s[60:63], s59 offen offset:{i*1024} lds")
    E("  s_mov_b64 exec, -1")
issueA(0, "0", "0")
for st in (1, 2):
    next_soff()
    issueA(st, "s58", "s59")
E("L_skip_issue0:")
E("  buffer_load_dword v31, v9, s[28:31], 0 offen")
srd(32, 16, 17, WS_BYTES)
srd(40, 14, 15, 256)
srd(36, 6, 7, W_BYTES)
srd(60, 8, 9, W_BYTES)
E("  s_add_u32 s52, s68, s2")
E("  v_mov_b32 v1, 0")
E("  s_cmp_lg_u32 s52, 0")
E("  s_cbranch_scc1 L_notok")
E("  s_memrealtime s[52:53]")
E("  s_waitcnt lgkmcnt(0)")
E("  s_or_b32 s52, s52, 1")
E("  v_mov_b32 v8, s52")
E("  s_mov_b64 exec, 1")
E("  buffer_store_dword v8, v1, s[40:43], 0 offen sc1")
E("  s_mov_b64 exec, -1")
E("L_notok:")
E("  v_lshlrev_b32 v6, 10, v3")
E("  v_lshl_add_u32 v6, v14, 4, v6")
E("  v_add_u32 v15, s49, v6")
def wd_u(ubase, mul, ldsbase):
    E(f"  s_mul_i32 s52, s68, {mul}")
    E(f"  s_lshl_b32 s53, s52, 12")
    E(f"  s_add_u32 s53, s53, {ldsbase}")
    E(f"  s_add_u32 s52, s52, {ubase}           ; u")
    E("  s_lshr_b32 s54, s52, 1")
    E("  s_mul_i32 s54, s54, 3")
    E("  s_and_b32 s58, s52, 1")
    E("  s_add_u32 s54, s54, s58")
    E("  s_mul_i32 s58, s52, 3")
    E("  s_sub_u32 s58, s58, 85")
    E("  s_cmp_le_u32 s52, 28")
    E("  s_cselect_b32 s54, s54, s58")
    E("  s_lshl_b32 s54, s54, 15")
    E("  s_mov_b32 m0, s53")
    for e in range(4):
        E(f"  s_add_u32 s58, s54, {e*7168}")
        E(f"  buffer_load_dwordx4 v15, s[28:31], s58 offen offset:{e*1024} lds")
def wd_group(g):
    for h in range(2):
        if g < 4: wd_u(8*g + h, 2, 32768 + (8*g + h)*4096)
        else: wd_u(32 + h, 2, h*4096)
E("  s_cmp_ge_u32 s46, 15")
E("  s_cbranch_scc1 L_idle_l")
E("  s_waitcnt vmcnt(17)")
E("  s_barrier                             ; B0")
cnt = {0: 9, 1: 13, 2: 16, 3: 16, 4: 16, 5: 12, 6: 16}
for i in range(7):
    E(f"  s_waitcnt vmcnt({cnt[i]})")
    E("  s_barrier")
    if i <= 4:
        next_soff()
        issueA(i+3, "s58", "s59")
    if i <= 3:
        issueB(i)
    if i == 5:
        for s_ in range(4, 8): issueB(s_)
    if i == 6:
        wd_group(0)
E("  s_waitcnt vmcnt(8)")
E("  s_barrier                             ; barrier 7")
wd_group(1)
E("  buffer_load_dword v30, v1, s[40:43], 0 offen sc1   ; token")
E("  s_barrier                             ; Bq")
wd_group(2)
E("  s_barrier                             ; Bm")
wd_group(3)
E("  s_cmp_lg_u32 s68, 0")
E("  s_cbranch_scc1 L_tokdone")
E("  s_waitcnt vmcnt(16)                   ; token")
E("  s_mov_b32 s58, 0")
E("L_tok:")
E("  v_readfirstlane_b32 s55, v30")
E("  s_cmp_lg_u32 s55, 0")
E("  s_cbranch_scc1 L_tokdone")
E("  s_sleep 2")
E("  buffer_load_dword v30, v1, s[40:43], 0 offen sc1")
E("  s_waitcnt vmcnt(0)")
E("  s_add_u32 s58, s58, 1")
E("  s_cmp_lt_u32 s58, 0x100000")
E("  s_cbranch_scc1 L_tok")
E("L_tokdone:")
E("  s_lshl_b32 s56, s45, 8")
E("  s_lshl_b32 s57, s46, 2")
E("  s_add_u32 s56, s56, s57")
E(f"  s_add_u32 s56, s56, {FLAG_OFF}")
E("  s_barrier                             ; B1")
E("  s_cmp_lg_u32 s68, 0")
E("  s_cbranch_scc1 L_noflagA")
E("  s_mov_b64 exec, 1")
E("  buffer_store_dword v30, v1, s[32:35], s56 offen sc1")
E("  s_mov_b64 exec, -1")
E("L_noflagA:")
wd_group(4)
E("  s_branch L_join_l")
E("L_idle_l:")
E("  buffer_load_dword v30, v1, s[40:43], 0 offen sc1   ; token")
for g in range(5): wd_group(g)
E("  s_cmp_lg_u32 s68, 0")
E("  s_cbranch_scc1 L_join_l")
E("  s_waitcnt vmcnt(40)")
E("  s_mov_b32 s58, 0")
E("L_tok2:")
E("  v_readfirstlane_b32 s55, v30")
E("  s_cmp_lg_u32 s55, 0")
E("  s_cbranch_scc1 L_join_l")
E("  s_sleep 2")
E("  buffer_load_dword v30, v1, s[40:43], 0 offen sc1")
E("  s_waitcnt vmcnt(0)")
E("  s_add_u32 s58, s58, 1")
E("  s_cmp_lt_u32 s58, 0x100000")
E("  s_cbranch_scc1 L_tok2")
E("L_join_l:")
def poll(tag, off, mask):
    E("  s_lshr_b32 s57, s47, 1")
    E("  s_lshl_b32 s57, s57, 8")
    E(f"  s_add_u32 s57, s57, {FLAG_OFF + off}")
    E("  v_lshlrev_b32 v8, 2, v2")
    E(f"  s_mov_b64 exec, {mask}")
    E("  s_mov_b32 s58, 0")
    E(f"L_poll{tag}:")
    E("  buffer_load_dword v9, v8, s[32:35], s57 offen sc1")
    E("  s_waitcnt vmcnt(0)")
    E("  v_cmp_ne_u32 vcc, s55, v9")
    E("  s_cmp_eq_u64 vcc, 0")
    E(f"  s_cbranch_scc1 L_pollok{tag}")
    E("  s_sleep 1")
    E("  s_add_u32 s58, s58, 1")
    E("  s_cmp_lt_u32 s58, 0x100000")
    E(f"  s_cbranch_scc1 L_poll{tag}")
    E(f"L_pollok{tag}:")
    E("  s_mov_b64 exec, -1")
E("  s_cmp_lg_u32 s68, 0")
E("  s_cbranch_scc1 L_nopollA")
poll("A", 0, "0x7fff")
E("L_nopollA:")
E("  s_waitcnt vmcnt(8)")
E("  s_barrier                             ; B3A")
E("  s_barrier                             ; B2B")
E("  s_cmp_lg_u32 s68, 0")
E("  s_cbranch_scc1 L_late")
E("  s_cmp_ge_u32 s46, 14")
E("  s_cbranch_scc1 L_late")
E("  s_add_u32 s56, s56, 128")
E("  s_mov_b64 exec, 1")
E("  buffer_store_dword v30, v1, s[32:35], s56 offen sc1")
E("  s_mov_b64 exec, -1")
E("L_late:")
wd_u(40, 1, 32768)
E("  s_cmp_lg_u32 s68, 0")
E("  s_cbranch_scc1 L_nopollB")
poll("B", 128, "0x3fff")
E("L_nopollB:")
E("  s_waitcnt vmcnt(0)")
E("  s_barrier                             ; B3B")
E("  s_barrier                             ; B5")
E("L_done:")
E("  s_endpgm")
E('.section .rodata,"a"')
E(".p2align 6")
E(f".amdhsa_kernel {K}")
E("  .amdhsa_next_free_vgpr 168")
E("  .amdhsa_next_free_sgpr 100")
E("  .amdhsa_accum_offset 168")
E("  .amdhsa_group_segment_fixed_size 0")
E("  .amdhsa_kernarg_size 56")
E("  .amdhsa_user_sgpr_count 2")
E("  .amdhsa_user_sgpr_kernarg_segment_ptr 1")
E("  .amdhsa_system_sgpr_workgroup_id_x 1")
E(".end_amdhsa_kernel")
path = sys.argv[1] if len(sys.argv) > 1 else "standalone__swiglu_ffn__prompt.s"
open(path, "w").write(HDR + "\n".join(out) + "\n")
```

```python
import sys, os
HDR = """; Kernarg layout for this problem (56 bytes, ptrs only, base s[0:1]):
; @launch grid=(256,1,1) block=(768,1,1) lds=163840
.amdgcn_target "amdgcn-amd-amdhsa--gfx950"
.text
"""
STAMP = int(os.environ.get("STAMP", "0"))
NEX = int(os.environ.get("NEX", "4"))
out = []
def E(s=""):
    out.append(s)
NST = [0]
def stamp(drain=False):
    if STAMP:
        n = NST[0]; NST[0] += 1
        E(f"  s_memrealtime s[{70+2*n}:{71+2*n}]")
        if n == 0:
            E("  s_memtime s[96:97]")
        if drain:
            E("  s_waitcnt lgkmcnt(0)")
def stamp_flush():
    if not STAMP: return
    n = NST[0]
    assert n <= 12
    E("  s_waitcnt vmcnt(0) lgkmcnt(0)")
    E(f"  s_memrealtime s[{70+2*n}:{71+2*n}]")
    E("  s_memtime s[98:99]")
    E("  s_waitcnt lgkmcnt(0)")
    E("  s_sub_u32 s98, s98, s96")
    E("  s_cmp_lg_u32 s44, 0")
    E(f"  s_cbranch_scc1 Lst_skip")
    E("  s_lshl_b32 s58, s2, 7")
    E("  s_add_u32 s58, s58, 0x800000")
    E("  v_mov_b32 v1, s58")
    E("  s_mov_b64 exec, 1")
    for i in range(n+1):
        E(f"  v_mov_b32 v2, s{70+2*i}")
        E(f"  v_mov_b32 v3, s{71+2*i}")
        E(f"  global_store_dwordx2 v1, v[2:3], s[16:17] offset:{8*i}")
        E("  s_nop 1")
    E("  v_mov_b32 v2, s98")
    E("  v_mov_b32 v3, 0")
    E("  global_store_dwordx2 v1, v[2:3], s[16:17] offset:120")
    E(f"Lst_skip:")

X_BYTES = 2048*1024
W_BYTES = 512*2752
WD_BYTES = 1376*1024
WS_BYTES = 8 << 20
FLAG_OFF = 6 << 20
OUT_BYTES = 2048*1024
OOB = 0x40000000
SLOT = 32768
def srd(d, lo, hi, nbytes):
    E(f"  s_mov_b32 s{d}, s{lo}")
    E(f"  s_and_b32 s{d+1}, s{hi}, 0xffff")
    E(f"  s_mov_b32 s{d+2}, {nbytes}")
    E(f"  s_mov_b32 s{d+3}, 0x20000")

K = "standalone__swiglu_ffn__prompt_kernel"
E(f".globl {K}")
E(".p2align 8")
E(f".type {K},@function")
E(f"{K}:")
E("  s_cmp_ge_u32 s2, 256")
E("  s_cbranch_scc1 L_done")
stamp()
E("  s_load_dwordx8 s[4:11], s[0:1], 0")
E("  s_load_dwordx4 s[12:15], s[0:1], 32")
E("  s_load_dwordx2 s[16:17], s[0:1], 48   ; ws")
E("  s_and_b32 s50, s2, 7")
E("  s_lshr_b32 s51, s2, 3                 ; idx")
E("  s_and_b32 s45, s50, 1")
E("  s_lshl_b32 s45, s45, 3")
E("  s_and_b32 s52, s51, 7")
E("  s_add_u32 s45, s45, s52               ; mt (0..15)")
E("  s_lshr_b32 s46, s50, 1")
E("  s_lshl_b32 s46, s46, 2")
E("  s_lshr_b32 s52, s51, 3")
E("  s_add_u32 s46, s46, s52               ; nt (0..15)")
E("  s_lshl_b32 s47, s50, 2")
E("  s_and_b32 s52, s51, 3")
E("  s_add_u32 s47, s47, s52               ; mt2 (0..31)")
E("  s_lshr_b32 s48, s51, 2                ; nt2 (0..7)")
E("  s_lshl_b32 s49, s48, 7                ; nt2*128")
E("  v_lshrrev_b32 v1, 6, v0")
E("  v_and_b32 v2, 63, v0                  ; lane")
E("  v_readfirstlane_b32 s44, v1")
E("  v_lshrrev_b32 v3, 3, v2               ; lane>>3")
E("  v_lshrrev_b32 v4, 4, v2               ; g = lane>>4")
E("  v_and_b32 v5, 7, v2                   ; lane&7")
E("  s_cmp_ge_u32 s44, 8")
E("  s_cbranch_scc1 L_loader")

E("  s_lshr_b32 s66, s44, 1")
E("  s_and_b32 s67, s44, 1")
E("  v_lshlrev_b32 v28, 4, v2              ; lane*16")
E("  v_and_b32 v30, 15, v2")
E("  v_lshlrev_b32 v30, 7, v30             ; (l&15)*128")
E("  v_bfe_u32 v31, v2, 1, 3")
E("  v_xor_b32 v31, v31, v4")
E("  v_lshl_add_u32 v30, v31, 4, v30")
E("  s_lshl_b32 s52, s44, 11")
E("  v_add_u32 v5, s52, v30")
E("  v_xor_b32 v6, 64, v5")
E("  v_xor_b32 v7, 0x800, v5")
E("  v_xor_b32 v8, 0x800, v6")
for i in range(4):
    E(f"  v_add_u32 v{9+i}, 0x10000, v{5+i}")
E("  v_bfe_u32 v30, v2, 2, 2               ; r")
E("  v_bfe_u32 v31, v2, 4, 1               ; g&1")
E("  v_lshl_add_u32 v30, v31, 2, v30")
E("  v_lshrrev_b32 v31, 5, v2")
E("  v_lshl_add_u32 v30, v31, 4, v30")
E("  v_lshlrev_b32 v30, 7, v30")
E("  v_and_b32 v31, 3, v2")
E("  v_lshl_add_u32 v30, v31, 3, v30       ; lanepart")
E("  v_bfe_u32 v31, v2, 3, 2               ; y")
for cb in range(4):
    E(f"  v_xor_b32 v25, {cb}, v31")
    E(f"  v_lshl_add_u32 v{17+cb}, v25, 5, v30")
    E(f"  v_add_u32 v{21+cb}, 0x20000, v{17+cb}")
E("  s_lshl_b32 s52, s67, 1")
E("  v_xor_b32 v25, s52, v31")
E("  v_lshl_add_u32 v13, v25, 5, v30")
E("  v_add_u32 v13, 16384, v13")
E("  v_xor_b32 v14, 32, v13                ; pa1")
E("  v_add_u32 v15, 0x10000, v13")
E("  v_add_u32 v16, 0x10000, v14")
for r in range(136, 168):
    E(f"  v_mov_b32 v{r}, 0")
E("  s_lshl_b32 s52, s45, 3                ; mt*8")
E("  s_add_u32 s53, s52, s44")
E("  s_xor_b32 s54, s53, 1")
E("  s_mul_i32 s53, s53, 43")
E("  s_mul_i32 s54, s54, 43")
E("  s_mul_i32 s52, s46, 3")
E("  s_add_u32 s53, s53, s52")
E("  s_add_u32 s54, s54, s52")
E("  s_add_u32 s55, s53, 2")
E("  s_lshl_b32 s55, s55, 10")
E("  s_add_u32 s53, s53, s67")
E("  s_lshl_b32 s53, s53, 10")
E("  s_add_u32 s54, s54, s67")
E("  s_lshl_b32 s54, s54, 10")
E("  s_mov_b32 s68, 0xbfb8aa3b             ; -log2(e)")
E("  s_mov_b32 s69, 0xbfb8aa3b")
E("  s_mov_b32 s50, 1.0")
E("  s_mov_b32 s51, 1.0")
E("  s_cmp_eq_u32 s46, 14")
E("  s_cselect_b32 s57, s67, 0")
E("  s_waitcnt lgkmcnt(0)")
srd(32, 16, 17, WS_BYTES)
srd(36, 12, 13, OUT_BYTES)
E("  s_cmp_ge_u32 s46, 15")
E("  s_cbranch_scc1 L_join")

P, Q = 32, 52
BANK = 72
ACCA = 136
ACCB = [32, 52, 8, 12]
def readsA(B, stage, ks):
    slot = stage & 3
    hi = slot >= 2
    so = (slot & 1) * SLOT
    xo = (9 if hi else 5) + ks
    pa = 15 if hi else 13
    bk = BANK + (stage*2 + ks)*4
    r_ = [f"  ds_read_b128 v[{bk}:{bk+3}], v{xo} offset:{so}",
          f"  ds_read_b128 v[{B}:{B+3}], v{xo+2} offset:{so}"]
    for gu in range(2):
        for i in range(2):
            for jj in range(2):
                r = B + 4 + gu*8 + i*4 + jj*2
                r_.append(f"  ds_read_b64_tr_b16 v[{r}:{r+1}], v{pa+i} offset:{so + jj*1024 + ks*4096 + gu*8192}")
    return r_
def mfmaA(B, stage, ks):
    m = []
    bk = BANK + (stage*2 + ks)*4
    for gu in range(2):
        for i in range(2):
            for ms in range(2):
                a = B + 4 + gu*8 + i*4
                b = bk if ms == 0 else B
                c = ACCA + gu*16 + (ms*2+i)*4
                m.append((f"  v_mfma_f32_16x16x32_bf16 v[{c}:{c+3}], v[{a}:{a+3}], v[{b}:{b+3}], v[{c}:{c+3}]", 2 + 2*(gu*2+i+1)))
    return m
def readsB(B, kk):
    stage, ks = kk >> 1, kk & 1
    pb = 21 if stage < 4 else 17
    so = (stage & 3)*8192
    r_ = []
    for cb in range(4):
        for jj in range(2):
            r = B + 4 + cb*4 + jj*2
            r_.append(f"  ds_read_b64_tr_b16 v[{r}:{r+1}], v{pb+cb} offset:{so + jj*1024 + ks*4096}")
    return r_
def mfmaB(B, kk):
    m = []
    bk = BANK + kk*4
    for cb in range(4):
        a = B + 4 + cb*4
        c = ACCB[cb]
        cin = "0" if kk == 0 else f"v[{c}:{c+3}]"
        m.append((f"  v_mfma_f32_16x16x32_bf16 v[{c}:{c+3}], v[{a}:{a+3}], v[{bk}:{bk+3}], {cin}", 2*(cb+1)))
    return m
EXTRA = []
def block(mf, nprev, rd, nextra=0):
    n = len(mf); ri = 0; last = None
    for j, (m, need) in enumerate(mf):
        allowed = min(15, nprev - need + ri)
        if allowed != last:
            E(f"  s_waitcnt lgkmcnt({allowed})")
            last = allowed
        E(m)
        tgt = -(-len(rd) * (j+1) // n)
        while ri < tgt:
            E(rd[ri]); ri += 1; last = None
        for _ in range(nextra):
            if EXTRA:
                for l in EXTRA.pop(0): E(l)
def silu_lines(g, u, d):
    L = []
    L.append(f"  v_pk_mul_f32 v[{u}:{u+1}], v[{g}:{g+1}], v[{u}:{u+1}]")
    L.append(f"  v_pk_mul_f32 v[{u+2}:{u+3}], v[{g+2}:{g+3}], v[{u+2}:{u+3}]")
    L.append(f"  v_pk_mul_f32 v[{g}:{g+1}], v[{g}:{g+1}], s[68:69]")
    L.append(f"  v_pk_mul_f32 v[{g+2}:{g+3}], v[{g+2}:{g+3}], s[68:69]")
    for e in range(4):
        L.append(f"  v_exp_f32 v{g+e}, v{g+e}")
    L.append(f"  v_pk_add_f32 v[{g}:{g+1}], v[{g}:{g+1}], s[50:51]")
    L.append(f"  v_pk_add_f32 v[{g+2}:{g+3}], v[{g+2}:{g+3}], s[50:51]")
    for e in range(4):
        L.append(f"  v_rcp_f32 v{g+e}, v{g+e}")
    L.append(f"  v_pk_mul_f32 v[{u}:{u+1}], v[{u}:{u+1}], v[{g}:{g+1}]")
    L.append(f"  v_pk_mul_f32 v[{u+2}:{u+3}], v[{u+2}:{u+3}], v[{g+2}:{g+3}]")
    L.append(f"  v_cvt_pk_bf16_f32 v{d}, v{u}, v{u+1}")
    L.append(f"  v_cvt_pk_bf16_f32 v{d+1}, v{u+2}, v{u+3}")
    return L

stamp()
E("  s_barrier")
stamp(True)
r0 = readsA(P, 0, 0)
for l in r0: E(l)
block(mfmaA(P, 0, 0), 10, readsA(Q, 0, 1))
for i in range(7):
    E("  s_barrier")
    block(mfmaA(Q, i, 1), 10, readsA(P, i+1, 0))
    block(mfmaA(P, i+1, 0), 10, readsA(Q, i+1, 1))
E("  s_barrier")
block(mfmaA(Q, 7, 1), 10, readsB(P, 0))
stamp(True)
EXTRA.append(["  s_nop 7"])
for ms in range(2):
    d = ACCA + ms*8
    for k2 in range(2):
        for l in silu_lines(ACCA + (ms*2+k2)*4, ACCA + 16 + (ms*2+k2)*4, d + 2*k2):
            EXTRA.append([l])
    EXTRA.append(["  s_cmp_eq_u32 s57, 1", f"  s_cbranch_scc1 L_nopair{ms}",
                  f"  buffer_store_dwordx4 v[{d}:{d+3}], v28, s[32:35], s{53+ms} offen sc1", f"L_nopair{ms}:"])
for kk in range(16):
    A, B = (P, Q) if kk % 2 == 0 else (Q, P)
    if kk == 2:
        E("  s_barrier")
    if kk == 7:
        E("  s_barrier")
    if kk == 9:
        E("  s_barrier")
    block(mfmaB(A, kk), 8 if not (STAMP and kk == 0) else 8, readsB(B, kk+1) if kk < 15 else [], NEX)
assert not EXTRA
stamp()
E("  s_waitcnt vmcnt(0)")
E("  s_barrier")
E("  s_nop 4")
for k2 in range(2):
    for l in silu_lines(ACCB[k2], ACCB[2+k2], ACCB[0] + 2*k2): E(l)
E("  s_cmp_eq_u32 s46, 14")
E("  s_cbranch_scc1 L_join")
E(f"  buffer_store_dwordx4 v[{ACCB[0]}:{ACCB[0]+3}], v28, s[32:35], s55 offen sc1")
E("L_join:")
stamp()
E("  s_lshl_b32 s52, s66, 12               ; kg*4096")
E("  v_lshrrev_b32 v5, 2, v2")
E("  v_lshlrev_b32 v5, 7, v5")
E("  v_and_b32 v6, 3, v2")
E("  v_lshl_add_u32 v5, v6, 3, v5")
E("  v_add_u32 v5, s52, v5")
E("  v_bfe_u32 v6, v2, 3, 2                ; y")
for cb in range(4):
    E(f"  v_xor_b32 v7, {cb}, v6")
    E(f"  v_lshl_add_u32 v{16+cb}, v7, 5, v5    ; base t=8,9 (R0)")
    E(f"  v_add_u32 v{20+cb}, 0x8000, v{16+cb}   ; t=0..3,10")
    E(f"  v_add_u32 v{24+cb}, 0x18000, v{16+cb}  ; t=4..7")
E("  v_add_u32 v29, 44032, v28")
E("  s_lshl_b32 s53, s47, 2")
E("  s_lshl_b32 s54, s67, 1")
E("  s_add_u32 s53, s53, s54")
E("  s_mul_i32 s53, s53, 44032")
for t in range(11):
    E(f"  s_add_u32 s54, s66, {4*t}")
    if t < 7:
        E("  s_lshr_b32 s55, s54, 1")
        E("  s_mul_i32 s55, s55, 3")
        E("  s_and_b32 s54, s54, 1")
        E("  s_add_u32 s55, s55, s54")
    elif t == 7:
        E("  s_mul_i32 s55, s54, 3")
        E("  s_sub_u32 s55, s55, 85")
        E("  s_cmp_eq_u32 s54, 28")
        E("  s_cselect_b32 s55, 42, s55")
    else:
        E("  s_mul_i32 s55, s54, 3")
        E("  s_sub_u32 s55, s55, 85")
    E("  s_lshl_b32 s55, s55, 10")
    E(f"  s_add_u32 s{4+t}, s55, s53")
E("  s_cmp_eq_u32 s66, 3")
E(f"  s_cselect_b32 s14, {OOB}, s14")
ACC = 64
for r in range(ACC, ACC+32):
    E(f"  v_mov_b32 v{r}, 0")
E("  s_barrier")
stamp(True)
WP, WQ = 32, 48
def reads2(B, t):
    r_ = []
    if t < 4: base, so = 20, t*16384
    elif t < 8: base, so = 24, (t-4)*16384
    elif t < 10: base, so = 16, (t-8)*16384
    else: base, so = 20, 0
    for cb in range(4):
        for jj in range(2):
            r = B + cb*4 + jj*2
            r_.append(f"  ds_read_b64_tr_b16 v[{r}:{r+1}], v{base+cb} offset:{so + jj*2048}")
    return r_
def hreg(t, mb): return 96 + ((t % 9)*2+mb)*4
def mfmas2(B, t):
    m = []
    for cb in range(4):
        for mb in range(2):
            c = ACC + (mb*4+cb)*4
            a = B + cb*4
            b = hreg(t, mb)
            m.append(f"  v_mfma_f32_16x16x32_bf16 v[{c}:{c+3}], v[{a}:{a+3}], v[{b}:{b+3}], v[{c}:{c+3}]")
    return m
def hload(t):
    for mb in range(2):
        r = hreg(t, mb)
        E(f"  buffer_load_dwordx4 v[{r}:{r+3}], v{28+mb}, s[32:35], s{4+t} offen sc1")
hload(0)
for l in reads2(WP, 0): E(l)
for t in range(1, 7): hload(t)
def step(t, younger, rd):
    A = WP if t % 2 == 0 else WQ
    mf = mfmas2(A, t)
    for j in range(4):
        lg = 6 if rd else 6 - 2*j
        if j == 0:
            E(f"  s_waitcnt vmcnt({younger}) lgkmcnt({lg})")
        else:
            E(f"  s_waitcnt lgkmcnt({lg})")
        for q in range(2):
            E(mf[2*j+q])
            if rd: E(rd[2*j+q])
for t in range(7):
    B = WQ if t % 2 == 0 else WP
    step(t, 2*(6-t), reads2(B, t+1))
    if t == 0:
        E("  s_barrier")
stamp()
E("  s_waitcnt lgkmcnt(0)")
E("  s_barrier")
stamp(True)
for t in range(7, 11): hload(t)
for t in range(7, 10):
    B = WQ if t % 2 == 0 else WP
    step(t, 2*(10-t), reads2(B, t+1))
E("  s_cmp_eq_u32 s66, 3")
E("  s_cbranch_scc1 L_no10")
step(10, 0, None)
E("L_no10:")
stamp()
RED = 49152
E("  s_lshl_b32 s53, s44, 13               ; w*8192")
E(f"  s_add_u32 s53, s53, {RED}")
E("  v_add_u32 v5, s53, v28")
E("  s_lshr_b32 s54, s66, 1                ; mh'")
E("  s_lshl_b32 s54, s54, 13")
E("  s_and_b32 s55, s66, 1")
E("  s_lshl_b32 s55, s55, 12")
E("  s_add_u32 s54, s54, s55")
E("  s_lshl_b32 s55, s67, 11")
E("  s_add_u32 s54, s54, s55")
E(f"  s_add_u32 s54, s54, {RED}")
E("  v_add_u32 v6, s54, v28")
E("  s_waitcnt vmcnt(0) lgkmcnt(0)")
E("  s_nop 2")
for t in range(8):
    c = ACC + t*4
    E(f"  ds_write_b128 v5, v[{c}:{c+3}] offset:{t*1024}")
E("  s_lshl_b32 s53, s47, 6")
E("  s_lshl_b32 s54, s66, 4")
E("  s_add_u32 s53, s53, s54")
E("  v_and_b32 v8, 15, v2")
E("  v_add_u32 v8, s53, v8")
E("  v_lshlrev_b32 v8, 10, v8")
E("  s_lshl_b32 s54, s67, 6")
E("  s_add_u32 s54, s54, s49")
E("  v_add_u32 v8, s54, v8")
E("  v_and_b32 v9, 1, v4")
E("  v_lshl_add_u32 v8, v9, 5, v8")
E("  v_lshrrev_b32 v9, 1, v4")
E("  v_lshl_add_u32 v8, v9, 4, v8")
E("  s_waitcnt lgkmcnt(0)")
E("  s_barrier                             ; B5")
for kg in range(4):
    for h in range(2):
        r = 96 + (kg*2+h)*4
        E(f"  ds_read_b128 v[{r}:{r+3}], v6 offset:{kg*16384 + h*1024}")
E("  s_waitcnt lgkmcnt(0)")
for h in range(2):
    for q in range(2):
        r0 = 96 + h*4 + q*2
        E(f"  v_pk_add_f32 v[{r0}:{r0+1}], v[{r0}:{r0+1}], v[{r0+8}:{r0+9}]")
        E(f"  v_pk_add_f32 v[{r0+16}:{r0+17}], v[{r0+16}:{r0+17}], v[{r0+24}:{r0+25}]")
        E(f"  v_pk_add_f32 v[{r0}:{r0+1}], v[{r0}:{r0+1}], v[{r0+16}:{r0+17}]")
for h in range(2):
    r0 = 96 + h*4
    E(f"  v_cvt_pk_bf16_f32 v{32+2*h}, v{r0}, v{r0+1}")
    E(f"  v_cvt_pk_bf16_f32 v{33+2*h}, v{r0+2}, v{r0+3}")
E("  s_nop 1")
E("  v_permlane16_swap_b32 v32, v34")
E("  v_permlane16_swap_b32 v33, v35")
E("  buffer_store_dwordx4 v[32:35], v8, s[36:39], 0 offen")
stamp_flush()
E("  s_endpgm")

E("L_loader:")
E("  s_sub_u32 s68, s44, 8                 ; L")
E("  s_lshl_b32 s52, s2, 2")
E("  s_add_u32 s52, s52, s68")
E("  s_mul_i32 s52, s52, 1408")
E("  v_lshlrev_b32 v9, 7, v2")
E("  v_add_u32 v9, s52, v9")
E("  v_cmp_gt_u32 vcc, 11, v2")
E("  v_mov_b32 v8, 0x40000000")
E("  s_lshl_b32 s52, s45, 7                ; mt*128")
E("  s_lshl_b32 s53, s68, 5                ; 32L")
E("  v_cndmask_b32 v9, v8, v9, vcc")
E("  s_add_u32 s52, s52, s53")
E("  v_add_u32 v6, s52, v3")
E("  v_lshlrev_b32 v6, 10, v6")
E("  v_xor_b32 v7, v5, v4")
E("  v_lshl_add_u32 v10, v7, 4, v6")
E("  v_xor_b32 v7, 4, v7")
E("  v_lshl_add_u32 v11, v7, 4, v6")
E("  v_add_u32 v12, 14336, v10")
E("  v_add_u32 v13, 21504, v11")
E("  v_add_u32 v11, 7168, v11")
E("  v_lshlrev_b32 v7, 1, v4")
E("  v_xor_b32 v14, v7, v5                 ; j (0..7)")
E("  s_mul_i32 s54, s46, 192               ; nt*192")
E("  v_and_b32 v6, 3, v3")
E("  v_and_b32 v7, 4, v3")
E("  v_lshl_add_u32 v6, v7, 1, v6")
E("  v_mul_u32_u24 v6, 2752, v6")
E("  v_add_u32 v6, s54, v6")
E("  s_and_b32 s53, s68, 1")
E(f"  s_mul_i32 s53, s53, {32*2752}")
E("  v_lshl_add_u32 v7, v14, 4, v6")
E("  v_add_u32 v7, s53, v7")
for i in range(4):
    koff = ((i & 1) << 2) | ((i >> 1) << 4)
    E(f"  v_add_u32 v{16+i}, {koff*2752 - i*1024}, v7")
E("  v_and_b32 v7, 3, v14")
E("  v_lshl_add_u32 v7, v7, 4, v6")
E(f"  s_mul_i32 s53, s68, {16*2752}")
E("  s_add_u32 s53, s53, 128")
E("  v_add_u32 v20, s53, v7")
E(f"  v_add_u32 v21, {4*2752 - 1024}, v20")
E("  v_cmp_gt_u32 s[64:65], 4, v14")
E("  s_and_b32 s55, s46, 3")
E("  s_lshl_b32 s55, s55, 1")
E("  s_and_b32 s52, s45, 7")
E("  s_add_u32 s55, s55, s52")
E("  s_sub_u32 s52, s55, 7")
E("  s_cmp_ge_u32 s55, 7")
E("  s_cselect_b32 s55, s52, s55")
E("  s_mov_b32 s3, s55")
E("  s_lshl_b32 s56, s68, 12               ; x m0 base 4096L")
E("  s_add_u32 s57, s56, 16384")
E("  s_lshl_b32 s69, s68, 11")
E("  s_not_b64 s[66:67], s[64:65]")
E("  s_waitcnt lgkmcnt(0)")
srd(20, 4, 5, X_BYTES)
E("  s_cmp_lt_u32 s68, 2")
E("  s_cselect_b32 s24, s6, s8")
E("  s_cselect_b32 s25, s7, s9")
E("  s_and_b32 s25, s25, 0xffff")
E(f"  s_mov_b32 s26, {W_BYTES}")
E("  s_mov_b32 s27, 0x20000")
srd(28, 10, 11, WD_BYTES)
E("  s_cmp_ge_u32 s46, 15")
E("  s_cbranch_scc1 L_skip_issue0")
def issueA(stage, sx, sw):
    slot = (stage & 3) * SLOT
    E(f"  s_add_u32 m0, s56, {slot}")
    E("  s_nop 0")
    for i in range(4):
        E(f"  buffer_load_dwordx4 v{10+i}, s[20:23], {sx} offen offset:{i*1024} lds")
    E(f"  s_add_u32 m0, s57, {slot}")
    E("  s_nop 0")
    for i in range(4):
        E(f"  buffer_load_dwordx4 v{16+i}, s[24:27], {sw} offen offset:{i*1024} lds")
def next_soff():
    for l in ["  s_lshl_b32 s58, s55, 7", "  s_add_u32 s58, s58, 128", "  s_mul_i32 s59, s55, 176128",
              "  s_add_u32 s59, s59, 176128", "  s_add_u32 s55, s55, 1", "  s_cmp_eq_u32 s55, 7",
              "  s_cselect_b32 s55, 0, s55"]: E(l)
def issueB(stage):
    lds = (131072 if stage < 4 else 0) + (stage & 3)*8192
    if stage == 0:
        E("  s_mov_b32 s59, 0")
    else:
        for l in ["  s_mul_i32 s59, s3, 176128", "  s_add_u32 s59, s59, 176128", "  s_add_u32 s3, s3, 1",
                  "  s_cmp_eq_u32 s3, 7", "  s_cselect_b32 s3, 0, s3"]: E(l)
    E(f"  s_add_u32 m0, s69, {lds}")
    E("  s_mov_b64 exec, s[64:65]")
    for i in range(2):
        E(f"  buffer_load_dwordx4 v{20+i}, s[36:39], s59 offen offset:{i*1024} lds")
    E("  s_mov_b64 exec, s[66:67]")
    for i in range(2):
        E(f"  buffer_load_dwordx4 v{20+i}, s[60:63], s59 offen offset:{i*1024} lds")
    E("  s_mov_b64 exec, -1")
issueA(0, "0", "0")
for st in (1, 2):
    next_soff()
    issueA(st, "s58", "s59")
E("L_skip_issue0:")
E("  buffer_load_dword v31, v9, s[28:31], 0 offen")
srd(32, 16, 17, WS_BYTES)
srd(40, 14, 15, 256)
srd(36, 6, 7, W_BYTES)
srd(60, 8, 9, W_BYTES)
E("  s_add_u32 s52, s68, s2")
E("  v_mov_b32 v1, 0")
E("  s_cmp_lg_u32 s52, 0")
E("  s_cbranch_scc1 L_notok")
E("  s_memrealtime s[52:53]")
E("  s_waitcnt lgkmcnt(0)")
E("  s_or_b32 s52, s52, 1")
E("  v_mov_b32 v8, s52")
E("  s_mov_b64 exec, 1")
E("  buffer_store_dword v8, v1, s[40:43], 0 offen sc1")
E("  s_mov_b64 exec, -1")
E("L_notok:")
E("  v_lshlrev_b32 v6, 10, v3")
E("  v_lshl_add_u32 v6, v14, 4, v6")
E("  v_add_u32 v15, s49, v6")
def wd_u(ubase, mul, ldsbase):
    E(f"  s_mul_i32 s52, s68, {mul}")
    E(f"  s_lshl_b32 s53, s52, 12")
    E(f"  s_add_u32 s53, s53, {ldsbase}")
    E(f"  s_add_u32 s52, s52, {ubase}           ; u")
    E("  s_lshr_b32 s54, s52, 1")
    E("  s_mul_i32 s54, s54, 3")
    E("  s_and_b32 s58, s52, 1")
    E("  s_add_u32 s54, s54, s58")
    E("  s_mul_i32 s58, s52, 3")
    E("  s_sub_u32 s58, s58, 85")
    E("  s_cmp_le_u32 s52, 28")
    E("  s_cselect_b32 s54, s54, s58")
    E("  s_lshl_b32 s54, s54, 15")
    E("  s_mov_b32 m0, s53")
    for e in range(4):
        E(f"  s_add_u32 s58, s54, {e*7168}")
        E(f"  buffer_load_dwordx4 v15, s[28:31], s58 offen offset:{e*1024} lds")
def wd_group(g):
    for h in range(2):
        if g < 4: wd_u(8*g + h, 2, 32768 + (8*g + h)*4096)
        else: wd_u(32 + h, 2, h*4096)
E("  s_cmp_ge_u32 s46, 15")
E("  s_cbranch_scc1 L_idle_l")
E("  s_waitcnt vmcnt(17)")
E("  s_barrier                             ; B0")
cnt = {0: 9, 1: 9, 2: 8, 3: 8, 4: 8, 5: 8, 6: 16}
for i in range(7):
    E(f"  s_waitcnt vmcnt({cnt[i]})")
    E("  s_barrier")
    if i <= 4:
        next_soff()
        issueA(i+3, "s58", "s59")
    if i == 5:
        for s_ in range(0, 4): issueB(s_)
    if i == 6:
        for s_ in range(4, 8): issueB(s_)
E("  s_waitcnt vmcnt(16)")
E("  s_barrier")
wd_group(0)
wd_group(1)
E("  buffer_load_dword v30, v1, s[40:43], 0 offen sc1   ; token")
E("  s_barrier                             ; Bq")
wd_group(2)
E("  s_waitcnt vmcnt(25)")
E("  s_barrier                             ; Bw")
E("  s_barrier                             ; Bm")
wd_group(3)
E("  s_cmp_lg_u32 s68, 0")
E("  s_cbranch_scc1 L_tokdone")
E("  s_waitcnt vmcnt(16)                   ; token")
E("  s_mov_b32 s58, 0")
E("L_tok:")
E("  v_readfirstlane_b32 s55, v30")
E("  s_cmp_lg_u32 s55, 0")
E("  s_cbranch_scc1 L_tokdone")
E("  s_sleep 2")
E("  buffer_load_dword v30, v1, s[40:43], 0 offen sc1")
E("  s_waitcnt vmcnt(0)")
E("  s_add_u32 s58, s58, 1")
E("  s_cmp_lt_u32 s58, 0x100000")
E("  s_cbranch_scc1 L_tok")
E("L_tokdone:")
E("  s_lshl_b32 s56, s45, 8")
E("  s_lshl_b32 s57, s46, 2")
E("  s_add_u32 s56, s56, s57")
E(f"  s_add_u32 s56, s56, {FLAG_OFF}")
E("  s_barrier                             ; B1")
E("  s_cmp_lg_u32 s68, 0")
E("  s_cbranch_scc1 L_noflagA")
E("  s_mov_b64 exec, 1")
E("  buffer_store_dword v30, v1, s[32:35], s56 offen sc1")
E("  s_mov_b64 exec, -1")
E("L_noflagA:")
wd_group(4)
E("  s_branch L_join_l")
E("L_idle_l:")
E("  buffer_load_dword v30, v1, s[40:43], 0 offen sc1   ; token")
for g in range(5): wd_group(g)
E("  s_cmp_lg_u32 s68, 0")
E("  s_cbranch_scc1 L_join_l")
E("  s_waitcnt vmcnt(40)")
E("  s_mov_b32 s58, 0")
E("L_tok2:")
E("  v_readfirstlane_b32 s55, v30")
E("  s_cmp_lg_u32 s55, 0")
E("  s_cbranch_scc1 L_join_l")
E("  s_sleep 2")
E("  buffer_load_dword v30, v1, s[40:43], 0 offen sc1")
E("  s_waitcnt vmcnt(0)")
E("  s_add_u32 s58, s58, 1")
E("  s_cmp_lt_u32 s58, 0x100000")
E("  s_cbranch_scc1 L_tok2")
E("L_join_l:")
def poll(tag, off, mask):
    E("  s_lshr_b32 s57, s47, 1")
    E("  s_lshl_b32 s57, s57, 8")
    E(f"  s_add_u32 s57, s57, {FLAG_OFF + off}")
    E("  v_lshlrev_b32 v8, 2, v2")
    E(f"  s_mov_b64 exec, {mask}")
    E("  s_mov_b32 s58, 0")
    E(f"L_poll{tag}:")
    E("  buffer_load_dword v9, v8, s[32:35], s57 offen sc1")
    E("  s_waitcnt vmcnt(0)")
    E("  v_cmp_ne_u32 vcc, s55, v9")
    E("  s_cmp_eq_u64 vcc, 0")
    E(f"  s_cbranch_scc1 L_pollok{tag}")
    E("  s_sleep 1")
    E("  s_add_u32 s58, s58, 1")
    E("  s_cmp_lt_u32 s58, 0x100000")
    E(f"  s_cbranch_scc1 L_poll{tag}")
    E(f"L_pollok{tag}:")
    E("  s_mov_b64 exec, -1")
E("  s_cmp_lg_u32 s68, 0")
E("  s_cbranch_scc1 L_nopollA")
poll("A", 0, "0x7fff")
E("L_nopollA:")
E("  s_waitcnt vmcnt(8)")
E("  s_barrier                             ; B3A")
E("  s_barrier                             ; B2B")
E("  s_cmp_lg_u32 s68, 0")
E("  s_cbranch_scc1 L_late")
E("  s_cmp_ge_u32 s46, 14")
E("  s_cbranch_scc1 L_late")
E("  s_add_u32 s56, s56, 128")
E("  s_mov_b64 exec, 1")
E("  buffer_store_dword v30, v1, s[32:35], s56 offen sc1")
E("  s_mov_b64 exec, -1")
E("L_late:")
wd_u(40, 1, 32768)
E("  s_cmp_lg_u32 s68, 0")
E("  s_cbranch_scc1 L_nopollB")
poll("B", 128, "0x3fff")
E("L_nopollB:")
E("  s_waitcnt vmcnt(0)")
E("  s_barrier                             ; B3B")
E("  s_barrier                             ; B5")
E("L_done:")
E("  s_endpgm")
E('.section .rodata,"a"')
E(".p2align 6")
E(f".amdhsa_kernel {K}")
E("  .amdhsa_next_free_vgpr 168")
E("  .amdhsa_next_free_sgpr 100")
E("  .amdhsa_accum_offset 168")
E("  .amdhsa_group_segment_fixed_size 0")
E("  .amdhsa_kernarg_size 56")
E("  .amdhsa_user_sgpr_count 2")
E("  .amdhsa_user_sgpr_kernarg_segment_ptr 1")
E("  .amdhsa_system_sgpr_workgroup_id_x 1")
E(".end_amdhsa_kernel")
path = sys.argv[1] if len(sys.argv) > 1 else "standalone__swiglu_ffn__prompt.s"
open(path, "w").write(HDR + "\n".join(out) + "\n")
```

```python
import sys, os
HDR = """; Kernarg layout for this problem (56 bytes, ptrs only, base s[0:1]):
; @launch grid=(256,1,1) block=(768,1,1) lds=163840
.amdgcn_target "amdgcn-amd-amdhsa--gfx950"
.text
"""
STAMP = int(os.environ.get("STAMP", "0"))
NEX = int(os.environ.get("NEX", "8"))
FA = int(os.environ.get("FA", "12"))
TB = int(os.environ.get("TB", "4"))
out = []
def E(s=""):
    out.append(s)
NST = [0]
def stamp(drain=False):
    if STAMP:
        n = NST[0]; NST[0] += 1
        E(f"  s_memrealtime s[{70+2*n}:{71+2*n}]")
        if n == 0:
            E("  s_memtime s[96:97]")
        if drain:
            E("  s_waitcnt lgkmcnt(0)")
def stamp_flush():
    if not STAMP: return
    n = NST[0]
    assert n <= 12
    E("  s_waitcnt vmcnt(0) lgkmcnt(0)")
    E(f"  s_memrealtime s[{70+2*n}:{71+2*n}]")
    E("  s_memtime s[98:99]")
    E("  s_waitcnt lgkmcnt(0)")
    E("  s_sub_u32 s98, s98, s96")
    E("  s_cmp_lg_u32 s44, 0")
    E(f"  s_cbranch_scc1 Lst_skip")
    E("  s_lshl_b32 s58, s2, 7")
    E("  s_add_u32 s58, s58, 0x800000")
    E("  v_mov_b32 v1, s58")
    E("  s_mov_b64 exec, 1")
    for i in range(n+1):
        E(f"  v_mov_b32 v2, s{70+2*i}")
        E(f"  v_mov_b32 v3, s{71+2*i}")
        E(f"  global_store_dwordx2 v1, v[2:3], s[16:17] offset:{8*i}")
        E("  s_nop 1")
    E("  v_mov_b32 v2, s98")
    E("  v_mov_b32 v3, 0")
    E("  global_store_dwordx2 v1, v[2:3], s[16:17] offset:120")
    E(f"Lst_skip:")

X_BYTES = 2048*1024
W_BYTES = 512*2752
WD_BYTES = 1376*1024
WS_BYTES = 8 << 20
FLAG_OFF = 6 << 20
OUT_BYTES = 2048*1024
OOB = 0x40000000
SLOT = 32768
def srd(d, lo, hi, nbytes):
    E(f"  s_mov_b32 s{d}, s{lo}")
    E(f"  s_and_b32 s{d+1}, s{hi}, 0xffff")
    E(f"  s_mov_b32 s{d+2}, {nbytes}")
    E(f"  s_mov_b32 s{d+3}, 0x20000")

K = "standalone__swiglu_ffn__prompt_kernel"
E(f".globl {K}")
E(".p2align 8")
E(f".type {K},@function")
E(f"{K}:")
E("  s_cmp_ge_u32 s2, 256")
E("  s_cbranch_scc1 L_done")
stamp()
E("  s_load_dwordx8 s[4:11], s[0:1], 0")
E("  s_load_dwordx4 s[12:15], s[0:1], 32")
E("  s_load_dwordx2 s[16:17], s[0:1], 48   ; ws")
E("  s_and_b32 s50, s2, 7")
E("  s_lshr_b32 s51, s2, 3                 ; idx")
E("  s_and_b32 s45, s50, 1")
E("  s_lshl_b32 s45, s45, 3")
E("  s_and_b32 s52, s51, 7")
E("  s_add_u32 s45, s45, s52               ; mt (0..15)")
E("  s_lshr_b32 s46, s50, 1")
E("  s_lshl_b32 s46, s46, 2")
E("  s_lshr_b32 s52, s51, 3")
E("  s_add_u32 s46, s46, s52               ; nt (0..15)")
E("  s_lshl_b32 s47, s50, 2")
E("  s_and_b32 s52, s51, 3")
E("  s_add_u32 s47, s47, s52               ; mt2 (0..31)")
E("  s_lshr_b32 s48, s51, 2                ; nt2 (0..7)")
E("  s_lshl_b32 s49, s48, 7                ; nt2*128")
E("  v_lshrrev_b32 v1, 6, v0")
E("  v_and_b32 v2, 63, v0                  ; lane")
E("  v_readfirstlane_b32 s44, v1")
E("  v_lshrrev_b32 v3, 3, v2               ; lane>>3")
E("  v_lshrrev_b32 v4, 4, v2               ; g = lane>>4")
E("  v_and_b32 v5, 7, v2                   ; lane&7")
E("  s_cmp_lt_u32 s44, 8")
E("  s_cbranch_scc1 L_compute")
IDX_ENTRY_END = len(out)
E("L_compute:")

E("  s_lshr_b32 s66, s44, 1")
E("  s_and_b32 s67, s44, 1")
E("  v_lshlrev_b32 v28, 4, v2              ; lane*16")
E("  v_and_b32 v30, 15, v2")
E("  v_lshlrev_b32 v30, 7, v30             ; (l&15)*128")
E("  v_bfe_u32 v31, v2, 1, 3")
E("  v_xor_b32 v31, v31, v4")
E("  v_lshl_add_u32 v30, v31, 4, v30")
E("  s_lshl_b32 s52, s44, 11")
E("  v_add_u32 v5, s52, v30")
E("  v_xor_b32 v6, 64, v5")
E("  v_xor_b32 v7, 0x800, v5")
E("  v_xor_b32 v8, 0x800, v6")
for i in range(4):
    E(f"  v_add_u32 v{9+i}, 0x10000, v{5+i}")
E("  v_bfe_u32 v30, v2, 2, 2               ; r")
E("  v_bfe_u32 v31, v2, 4, 1               ; g&1")
E("  v_lshl_add_u32 v30, v31, 2, v30")
E("  v_lshrrev_b32 v31, 5, v2")
E("  v_lshl_add_u32 v30, v31, 4, v30")
E("  v_lshlrev_b32 v30, 7, v30")
E("  v_and_b32 v31, 3, v2")
E("  v_lshl_add_u32 v30, v31, 3, v30       ; lanepart")
E("  v_bfe_u32 v31, v2, 3, 2               ; y")
for cb in range(4):
    E(f"  v_xor_b32 v25, {cb}, v31")
    E(f"  v_lshl_add_u32 v{17+cb}, v25, 5, v30")
    E(f"  v_add_u32 v{21+cb}, 0x20000, v{17+cb}")
E("  s_lshl_b32 s52, s67, 1")
E("  v_xor_b32 v25, s52, v31")
E("  v_lshl_add_u32 v13, v25, 5, v30")
E("  v_add_u32 v13, 16384, v13")
E("  v_xor_b32 v14, 32, v13                ; pa1")
E("  v_add_u32 v15, 0x10000, v13")
E("  v_add_u32 v16, 0x10000, v14")
for r in range(136, 168):
    E(f"  v_mov_b32 v{r}, 0")
E("  s_lshl_b32 s52, s45, 3                ; mt*8")
E("  s_add_u32 s53, s52, s44")
E("  s_xor_b32 s54, s53, 1")
E("  s_mul_i32 s53, s53, 43")
E("  s_mul_i32 s54, s54, 43")
E("  s_mul_i32 s52, s46, 3")
E("  s_add_u32 s53, s53, s52")
E("  s_add_u32 s54, s54, s52")
E("  s_add_u32 s55, s53, 2")
E("  s_lshl_b32 s55, s55, 10")
E("  s_add_u32 s53, s53, s67")
E("  s_lshl_b32 s53, s53, 10")
E("  s_add_u32 s54, s54, s67")
E("  s_lshl_b32 s54, s54, 10")
E("  s_mov_b32 s68, 0xbfb8aa3b             ; -log2(e)")
E("  s_mov_b32 s69, 0xbfb8aa3b")
E("  s_mov_b32 s50, 1.0")
E("  s_mov_b32 s51, 1.0")
E("  s_cmp_eq_u32 s46, 14")
E("  s_cselect_b32 s57, s67, 0")
E("  s_waitcnt lgkmcnt(0)")
srd(32, 16, 17, WS_BYTES)
srd(36, 12, 13, OUT_BYTES)
E("  s_cmp_ge_u32 s46, 15")
E("  s_cbranch_scc1 L_join")

P, Q = 32, 52
BANK = 72
ACCA = 136
ACCB = [32, 52, 8, 12]
def readsA(B, stage, ks):
    slot = stage & 3
    hi = slot >= 2
    so = (slot & 1) * SLOT
    xo = (9 if hi else 5) + ks
    pa = 15 if hi else 13
    bk = BANK + (stage*2 + ks)*4
    r_ = [f"  ds_read_b128 v[{bk}:{bk+3}], v{xo} offset:{so}",
          f"  ds_read_b128 v[{B}:{B+3}], v{xo+2} offset:{so}"]
    for gu in range(2):
        for i in range(2):
            for jj in range(2):
                r = B + 4 + gu*8 + i*4 + jj*2
                r_.append(f"  ds_read_b64_tr_b16 v[{r}:{r+1}], v{pa+i} offset:{so + jj*1024 + ks*4096 + gu*8192}")
    return r_
def mfmaA(B, stage, ks):
    m = []
    bk = BANK + (stage*2 + ks)*4
    for gu in range(2):
        for i in range(2):
            for ms in range(2):
                a = B + 4 + gu*8 + i*4
                b = bk if ms == 0 else B
                c = ACCA + gu*16 + (ms*2+i)*4
                m.append((f"  v_mfma_f32_16x16x32_bf16 v[{c}:{c+3}], v[{a}:{a+3}], v[{b}:{b+3}], v[{c}:{c+3}]", 2 + 2*(gu*2+i+1)))
    return m
def readsB(B, kk):
    stage, ks = kk >> 1, kk & 1
    pb = 21 if stage < 4 else 17
    so = (stage & 3)*8192
    r_ = []
    for cb in range(4):
        for jj in range(2):
            r = B + 4 + cb*4 + jj*2
            r_.append(f"  ds_read_b64_tr_b16 v[{r}:{r+1}], v{pb+cb} offset:{so + jj*1024 + ks*4096}")
    return r_
def mfmaB(B, kk):
    m = []
    bk = BANK + kk*4
    for cb in range(4):
        a = B + 4 + cb*4
        c = ACCB[cb]
        cin = "0" if kk == 0 else f"v[{c}:{c+3}]"
        m.append((f"  v_mfma_f32_16x16x32_bf16 v[{c}:{c+3}], v[{a}:{a+3}], v[{bk}:{bk+3}], {cin}", 2*(cb+1)))
    return m
EXTRA = []
def block(mf, nprev, rd, nextra=0):
    n = len(mf); ri = 0; last = None
    for j, (m, need) in enumerate(mf):
        allowed = min(15, nprev - need + ri)
        if allowed != last:
            E(f"  s_waitcnt lgkmcnt({allowed})")
            last = allowed
        E(m)
        tgt = -(-len(rd) * (j+1) // n)
        while ri < tgt:
            E(rd[ri]); ri += 1; last = None
        for _ in range(nextra):
            if EXTRA:
                for l in EXTRA.pop(0): E(l)
def silu_lines(g, u, d):
    L = []
    L.append(f"  v_pk_mul_f32 v[{u}:{u+1}], v[{g}:{g+1}], v[{u}:{u+1}]")
    L.append(f"  v_pk_mul_f32 v[{u+2}:{u+3}], v[{g+2}:{g+3}], v[{u+2}:{u+3}]")
    L.append(f"  v_pk_mul_f32 v[{g}:{g+1}], v[{g}:{g+1}], s[68:69]")
    L.append(f"  v_pk_mul_f32 v[{g+2}:{g+3}], v[{g+2}:{g+3}], s[68:69]")
    for e in range(4):
        L.append(f"  v_exp_f32 v{g+e}, v{g+e}")
    L.append(f"  v_pk_add_f32 v[{g}:{g+1}], v[{g}:{g+1}], s[50:51]")
    L.append(f"  v_pk_add_f32 v[{g+2}:{g+3}], v[{g+2}:{g+3}], s[50:51]")
    for e in range(4):
        L.append(f"  v_rcp_f32 v{g+e}, v{g+e}")
    L.append(f"  v_pk_mul_f32 v[{u}:{u+1}], v[{u}:{u+1}], v[{g}:{g+1}]")
    L.append(f"  v_pk_mul_f32 v[{u+2}:{u+3}], v[{u+2}:{u+3}], v[{g+2}:{g+3}]")
    L.append(f"  v_cvt_pk_bf16_f32 v{d}, v{u}, v{u+1}")
    L.append(f"  v_cvt_pk_bf16_f32 v{d+1}, v{u+2}, v{u+3}")
    return L

stamp()
E("  s_barrier")
stamp(True)
r0 = readsA(P, 0, 0)
for l in r0: E(l)
block(mfmaA(P, 0, 0), 10, readsA(Q, 0, 1))
for i in range(7):
    E("  s_barrier")
    block(mfmaA(Q, i, 1), 10, readsA(P, i+1, 0))
    block(mfmaA(P, i+1, 0), 10, readsA(Q, i+1, 1))
E("  s_barrier")
block(mfmaA(Q, 7, 1), 10, readsB(P, 0))
stamp(True)
EXTRA.append(["  s_nop 7"])
for ms in range(2):
    d = ACCA + ms*8
    for k2 in range(2):
        for l in silu_lines(ACCA + (ms*2+k2)*4, ACCA + 16 + (ms*2+k2)*4, d + 2*k2):
            EXTRA.append([l])
    EXTRA.append(["  s_cmp_eq_u32 s57, 1", f"  s_cbranch_scc1 L_nopair{ms}",
                  f"  buffer_store_dwordx4 v[{d}:{d+3}], v28, s[32:35], s{53+ms} offen sc1", f"L_nopair{ms}:"])
for kk in range(16):
    A, B = (P, Q) if kk % 2 == 0 else (Q, P)
    if kk == 2:
        E("  s_barrier")
    if kk == 7:
        E("  s_barrier")
    if kk == 9:
        E("  s_barrier")
    if kk == FA:
        E("  s_waitcnt vmcnt(0)")
        E("  s_barrier")
    block(mfmaB(A, kk), 8 if not (STAMP and kk == 0) else 8, readsB(B, kk+1) if kk < 15 else [], NEX)
assert not EXTRA
stamp()
E("  s_barrier                             ; B1: R0 free")
E("  s_nop 5")
for k2 in range(2):
    for l in silu_lines(ACCB[k2], ACCB[2+k2], ACCB[0] + 2*k2): E(l)
E("  s_cmp_eq_u32 s46, 14")
E("  s_cbranch_scc1 L_join")
E(f"  buffer_store_dwordx4 v[{ACCB[0]}:{ACCB[0]+3}], v28, s[32:35], s55 offen sc1")
E("L_join:")
stamp()
E("  s_lshl_b32 s52, s66, 12               ; kg*4096")
E("  v_lshrrev_b32 v5, 2, v2")
E("  v_lshlrev_b32 v5, 7, v5")
E("  v_and_b32 v6, 3, v2")
E("  v_lshl_add_u32 v5, v6, 3, v5")
E("  v_add_u32 v5, s52, v5")
E("  v_bfe_u32 v6, v2, 3, 2                ; y")
for cb in range(4):
    E(f"  v_xor_b32 v7, {cb}, v6")
    E(f"  v_lshl_add_u32 v{16+cb}, v7, 5, v5    ; base t=8,9 (R0)")
    E(f"  v_add_u32 v{20+cb}, 0x8000, v{16+cb}   ; t=0..3,10")
    E(f"  v_add_u32 v{24+cb}, 0x18000, v{16+cb}  ; t=4..7")
E("  v_add_u32 v29, 44032, v28")
E("  s_lshl_b32 s53, s47, 2")
E("  s_lshl_b32 s54, s67, 1")
E("  s_add_u32 s53, s53, s54")
E("  s_mul_i32 s53, s53, 44032")
for t in range(11):
    E(f"  s_add_u32 s54, s66, {4*t}")
    if t < 7:
        E("  s_lshr_b32 s55, s54, 1")
        E("  s_mul_i32 s55, s55, 3")
        E("  s_and_b32 s54, s54, 1")
        E("  s_add_u32 s55, s55, s54")
    elif t == 7:
        E("  s_mul_i32 s55, s54, 3")
        E("  s_sub_u32 s55, s55, 85")
        E("  s_cmp_eq_u32 s54, 28")
        E("  s_cselect_b32 s55, 42, s55")
    else:
        E("  s_mul_i32 s55, s54, 3")
        E("  s_sub_u32 s55, s55, 85")
    E("  s_lshl_b32 s55, s55, 10")
    E(f"  s_add_u32 s{4+t}, s55, s53")
E("  s_cmp_eq_u32 s66, 3")
E(f"  s_cselect_b32 s14, {OOB}, s14")
ACC = 64
for r in range(ACC, ACC+32):
    E(f"  v_mov_b32 v{r}, 0")
E("  s_waitcnt vmcnt(0)")
E("  s_barrier")
E("  s_barrier")
stamp(True)
WP, WQ = 32, 48
def reads2(B, t):
    r_ = []
    if t < 4: base, so = 20, t*16384
    elif t < 8: base, so = 24, (t-4)*16384
    elif t < 10: base, so = 16, (t-8)*16384
    else: base, so = 20, 0
    for cb in range(4):
        for jj in range(2):
            r = B + cb*4 + jj*2
            r_.append(f"  ds_read_b64_tr_b16 v[{r}:{r+1}], v{base+cb} offset:{so + jj*2048}")
    return r_
def hreg(t, mb): return 96 + ((t % 9)*2+mb)*4
def mfmas2(B, t):
    m = []
    for cb in range(4):
        for mb in range(2):
            c = ACC + (mb*4+cb)*4
            a = B + cb*4
            b = hreg(t, mb)
            m.append(f"  v_mfma_f32_16x16x32_bf16 v[{c}:{c+3}], v[{a}:{a+3}], v[{b}:{b+3}], v[{c}:{c+3}]")
    return m
def hload(t):
    for mb in range(2):
        r = hreg(t, mb)
        E(f"  buffer_load_dwordx4 v[{r}:{r+3}], v{28+mb}, s[32:35], s{4+t} offen sc1")
hload(0)
for l in reads2(WP, 0): E(l)
for t in range(1, 7): hload(t)
def step(t, younger, rd):
    A = WP if t % 2 == 0 else WQ
    mf = mfmas2(A, t)
    for j in range(4):
        lg = 6 if rd else 6 - 2*j
        if j == 0:
            E(f"  s_waitcnt vmcnt({younger}) lgkmcnt({lg})")
        else:
            E(f"  s_waitcnt lgkmcnt({lg})")
        for q in range(2):
            E(mf[2*j+q])
            if rd: E(rd[2*j+q])
order = list(range(7))
for t in range(10):
    B = WQ if t % 2 == 0 else WP
    if t == TB:
        stamp()
        E("  s_barrier")
        stamp(True)
        for t2 in range(7, 11): hload(t2)
        order += [7, 8, 9, 10]
    if t == 8:
        E("  s_waitcnt lgkmcnt(0)")
        E("  s_barrier")
    step(t, 2*(len(order) - 1 - order.index(t)), reads2(B, t+1))
    if t == 0:
        E("  s_barrier")
E("  s_cmp_eq_u32 s66, 3")
E("  s_cbranch_scc1 L_no10")
step(10, 0, None)
E("L_no10:")
stamp()
RED = 49152
E("  s_lshl_b32 s53, s44, 13               ; w*8192")
E(f"  s_add_u32 s53, s53, {RED}")
E("  v_add_u32 v5, s53, v28")
E("  s_lshr_b32 s54, s66, 1                ; mh'")
E("  s_lshl_b32 s54, s54, 13")
E("  s_and_b32 s55, s66, 1")
E("  s_lshl_b32 s55, s55, 12")
E("  s_add_u32 s54, s54, s55")
E("  s_lshl_b32 s55, s67, 11")
E("  s_add_u32 s54, s54, s55")
E(f"  s_add_u32 s54, s54, {RED}")
E("  v_add_u32 v6, s54, v28")
E("  s_waitcnt vmcnt(0) lgkmcnt(0)")
E("  s_nop 2")
for t in range(8):
    c = ACC + t*4
    E(f"  ds_write_b128 v5, v[{c}:{c+3}] offset:{t*1024}")
E("  s_lshl_b32 s53, s47, 6")
E("  s_lshl_b32 s54, s66, 4")
E("  s_add_u32 s53, s53, s54")
E("  v_and_b32 v8, 15, v2")
E("  v_add_u32 v8, s53, v8")
E("  v_lshlrev_b32 v8, 10, v8")
E("  s_lshl_b32 s54, s67, 6")
E("  s_add_u32 s54, s54, s49")
E("  v_add_u32 v8, s54, v8")
E("  v_and_b32 v9, 1, v4")
E("  v_lshl_add_u32 v8, v9, 5, v8")
E("  v_lshrrev_b32 v9, 1, v4")
E("  v_lshl_add_u32 v8, v9, 4, v8")
E("  s_waitcnt lgkmcnt(0)")
E("  s_barrier                             ; B5")
for kg in range(4):
    for h in range(2):
        r = 96 + (kg*2+h)*4
        E(f"  ds_read_b128 v[{r}:{r+3}], v6 offset:{kg*16384 + h*1024}")
E("  s_waitcnt lgkmcnt(0)")
for h in range(2):
    for q in range(2):
        r0 = 96 + h*4 + q*2
        E(f"  v_pk_add_f32 v[{r0}:{r0+1}], v[{r0}:{r0+1}], v[{r0+8}:{r0+9}]")
        E(f"  v_pk_add_f32 v[{r0+16}:{r0+17}], v[{r0+16}:{r0+17}], v[{r0+24}:{r0+25}]")
        E(f"  v_pk_add_f32 v[{r0}:{r0+1}], v[{r0}:{r0+1}], v[{r0+16}:{r0+17}]")
for h in range(2):
    r0 = 96 + h*4
    E(f"  v_cvt_pk_bf16_f32 v{32+2*h}, v{r0}, v{r0+1}")
    E(f"  v_cvt_pk_bf16_f32 v{33+2*h}, v{r0+2}, v{r0+3}")
E("  s_nop 1")
E("  v_permlane16_swap_b32 v32, v34")
E("  v_permlane16_swap_b32 v33, v35")
E("  buffer_store_dwordx4 v[32:35], v8, s[36:39], 0 offen")
stamp_flush()
E("  s_endpgm")

IDX_LOADER = len(out)
E("  s_sub_u32 s68, s44, 8                 ; L")
E("  s_lshl_b32 s52, s2, 2")
E("  s_add_u32 s52, s52, s68")
E("  s_mul_i32 s52, s52, 1408")
E("  v_lshlrev_b32 v9, 7, v2")
E("  v_add_u32 v9, s52, v9")
E("  v_cmp_gt_u32 vcc, 11, v2")
E("  v_mov_b32 v8, 0x40000000")
E("  s_lshl_b32 s52, s45, 7                ; mt*128")
E("  s_lshl_b32 s53, s68, 5                ; 32L")
E("  v_cndmask_b32 v9, v8, v9, vcc")
E("  s_add_u32 s52, s52, s53")
E("  v_add_u32 v6, s52, v3")
E("  v_lshlrev_b32 v6, 10, v6")
E("  v_xor_b32 v7, v5, v4")
E("  v_lshl_add_u32 v10, v7, 4, v6")
E("  v_xor_b32 v7, 4, v7")
E("  v_lshl_add_u32 v11, v7, 4, v6")
E("  v_add_u32 v12, 14336, v10")
E("  v_add_u32 v13, 21504, v11")
E("  v_add_u32 v11, 7168, v11")
E("  v_lshlrev_b32 v7, 1, v4")
E("  v_xor_b32 v14, v7, v5                 ; j (0..7)")
E("  s_mul_i32 s54, s46, 192               ; nt*192")
E("  v_and_b32 v6, 3, v3")
E("  v_and_b32 v7, 4, v3")
E("  v_lshl_add_u32 v6, v7, 1, v6")
E("  v_mul_u32_u24 v6, 2752, v6")
E("  v_add_u32 v6, s54, v6")
E("  s_and_b32 s53, s68, 1")
E(f"  s_mul_i32 s53, s53, {32*2752}")
E("  v_lshl_add_u32 v7, v14, 4, v6")
E("  v_add_u32 v7, s53, v7")
for i in range(4):
    koff = ((i & 1) << 2) | ((i >> 1) << 4)
    E(f"  v_add_u32 v{16+i}, {koff*2752 - i*1024}, v7")
E("  v_and_b32 v7, 3, v14")
E("  v_lshl_add_u32 v7, v7, 4, v6")
E(f"  s_mul_i32 s53, s68, {16*2752}")
E("  s_add_u32 s53, s53, 128")
E("  v_add_u32 v20, s53, v7")
E(f"  v_add_u32 v21, {4*2752 - 1024}, v20")
E("  v_cmp_gt_u32 s[64:65], 4, v14")
E("  s_and_b32 s55, s46, 3")
E("  s_lshl_b32 s55, s55, 1")
E("  s_and_b32 s52, s45, 7")
E("  s_add_u32 s55, s55, s52")
E("  s_sub_u32 s52, s55, 7")
E("  s_cmp_ge_u32 s55, 7")
E("  s_cselect_b32 s55, s52, s55")
E("  s_mov_b32 s3, s55")
E("  s_lshl_b32 s56, s68, 12               ; x m0 base 4096L")
E("  s_add_u32 s57, s56, 16384")
E("  s_lshl_b32 s69, s68, 11")
E("  s_not_b64 s[66:67], s[64:65]")
E("  s_waitcnt lgkmcnt(0)")
srd(20, 4, 5, X_BYTES)
E("  s_cmp_lt_u32 s68, 2")
E("  s_cselect_b32 s24, s6, s8")
E("  s_cselect_b32 s25, s7, s9")
E("  s_and_b32 s25, s25, 0xffff")
E(f"  s_mov_b32 s26, {W_BYTES}")
E("  s_mov_b32 s27, 0x20000")
srd(28, 10, 11, WD_BYTES)
E("  s_cmp_ge_u32 s46, 15")
E("  s_cbranch_scc1 L_skip_issue0")
def issueA(stage, sx, sw):
    slot = (stage & 3) * SLOT
    E(f"  s_add_u32 m0, s56, {slot}")
    E("  s_nop 0")
    for i in range(4):
        E(f"  buffer_load_dwordx4 v{10+i}, s[20:23], {sx} offen offset:{i*1024} lds")
    E(f"  s_add_u32 m0, s57, {slot}")
    E("  s_nop 0")
    for i in range(4):
        E(f"  buffer_load_dwordx4 v{16+i}, s[24:27], {sw} offen offset:{i*1024} lds")
def next_soff():
    for l in ["  s_lshl_b32 s58, s55, 7", "  s_add_u32 s58, s58, 128", "  s_mul_i32 s59, s55, 176128",
              "  s_add_u32 s59, s59, 176128", "  s_add_u32 s55, s55, 1", "  s_cmp_eq_u32 s55, 7",
              "  s_cselect_b32 s55, 0, s55"]: E(l)
def issueB(stage):
    lds = (131072 if stage < 4 else 0) + (stage & 3)*8192
    if stage == 0:
        E("  s_mov_b32 s59, 0")
    else:
        for l in ["  s_mul_i32 s59, s3, 176128", "  s_add_u32 s59, s59, 176128", "  s_add_u32 s3, s3, 1",
                  "  s_cmp_eq_u32 s3, 7", "  s_cselect_b32 s3, 0, s3"]: E(l)
    E(f"  s_add_u32 m0, s69, {lds}")
    E("  s_mov_b64 exec, s[64:65]")
    for i in range(2):
        E(f"  buffer_load_dwordx4 v{20+i}, s[36:39], s59 offen offset:{i*1024} lds")
    E("  s_mov_b64 exec, s[66:67]")
    for i in range(2):
        E(f"  buffer_load_dwordx4 v{20+i}, s[60:63], s59 offen offset:{i*1024} lds")
    E("  s_mov_b64 exec, -1")
issueA(0, "0", "0")
for st in (1, 2):
    next_soff()
    issueA(st, "s58", "s59")
E("L_skip_issue0:")
E("  buffer_load_dword v31, v9, s[28:31], 0 offen")
srd(32, 16, 17, WS_BYTES)
srd(40, 14, 15, 256)
srd(36, 6, 7, W_BYTES)
srd(60, 8, 9, W_BYTES)
E("  s_add_u32 s52, s68, s2")
E("  v_mov_b32 v1, 0")
E("  s_cmp_lg_u32 s52, 0")
E("  s_cbranch_scc1 L_notok")
E("  s_memrealtime s[52:53]")
E("  s_waitcnt lgkmcnt(0)")
E("  s_or_b32 s52, s52, 1")
E("  v_mov_b32 v8, s52")
E("  s_mov_b64 exec, 1")
E("  buffer_store_dword v8, v1, s[40:43], 0 offen sc1")
E("  s_mov_b64 exec, -1")
E("L_notok:")
E("  v_lshlrev_b32 v6, 10, v3")
E("  v_lshl_add_u32 v6, v14, 4, v6")
E("  v_add_u32 v15, s49, v6")
def wd_u(ubase, mul, ldsbase):
    E(f"  s_mul_i32 s52, s68, {mul}")
    E(f"  s_lshl_b32 s53, s52, 12")
    E(f"  s_add_u32 s53, s53, {ldsbase}")
    E(f"  s_add_u32 s52, s52, {ubase}           ; u")
    E("  s_lshr_b32 s54, s52, 1")
    E("  s_mul_i32 s54, s54, 3")
    E("  s_and_b32 s58, s52, 1")
    E("  s_add_u32 s54, s54, s58")
    E("  s_mul_i32 s58, s52, 3")
    E("  s_sub_u32 s58, s58, 85")
    E("  s_cmp_le_u32 s52, 28")
    E("  s_cselect_b32 s54, s54, s58")
    E("  s_lshl_b32 s54, s54, 15")
    E("  s_mov_b32 m0, s53")
    for e in range(4):
        E(f"  s_add_u32 s58, s54, {e*7168}")
        E(f"  buffer_load_dwordx4 v15, s[28:31], s58 offen offset:{e*1024} lds")
def wd_group(g):
    for h in range(2):
        if g < 4: wd_u(8*g + h, 2, 32768 + (8*g + h)*4096)
        else: wd_u(32 + h, 2, h*4096)
E("  s_cmp_ge_u32 s46, 15")
E("  s_cbranch_scc1 L_idle_l")
E("  s_waitcnt vmcnt(17)")
E("  s_barrier                             ; B0")
cnt = {0: 9, 1: 9, 2: 8, 3: 8, 4: 8, 5: 8, 6: 16}
for i in range(7):
    E(f"  s_waitcnt vmcnt({cnt[i]})")
    E("  s_barrier")
    if i <= 4:
        next_soff()
        issueA(i+3, "s58", "s59")
    if i == 5:
        for s_ in range(0, 4): issueB(s_)
    if i == 6:
        for s_ in range(4, 8): issueB(s_)
E("  s_waitcnt vmcnt(16)")
E("  s_barrier")
wd_group(0)
wd_group(1)
E("  buffer_load_dword v30, v1, s[40:43], 0 offen sc1   ; token")
E("  s_barrier                             ; Bq")
wd_group(2)
E("  s_waitcnt vmcnt(25)")
E("  s_barrier                             ; Bw")
E("  s_barrier                             ; Bm")
wd_group(3)
E("  s_cmp_lg_u32 s68, 0")
E("  s_cbranch_scc1 L_tokdone")
E("  s_waitcnt vmcnt(16)                   ; token")
E("  s_mov_b32 s58, 0")
E("L_tok:")
E("  v_readfirstlane_b32 s55, v30")
E("  s_cmp_lg_u32 s55, 0")
E("  s_cbranch_scc1 L_tokdone")
E("  s_sleep 2")
E("  buffer_load_dword v30, v1, s[40:43], 0 offen sc1")
E("  s_waitcnt vmcnt(0)")
E("  s_add_u32 s58, s58, 1")
E("  s_cmp_lt_u32 s58, 0x100000")
E("  s_cbranch_scc1 L_tok")
E("L_tokdone:")
E("  s_lshl_b32 s56, s45, 8")
E("  s_lshl_b32 s57, s46, 2")
E("  s_add_u32 s56, s56, s57")
E(f"  s_add_u32 s56, s56, {FLAG_OFF}")
E("  s_barrier                             ; Bfa")
E("  s_cmp_lg_u32 s68, 0")
E("  s_cbranch_scc1 L_noflagA")
E("  s_mov_b64 exec, 1")
E("  buffer_store_dword v30, v1, s[32:35], s56 offen sc1")
E("  s_mov_b64 exec, -1")
E("L_noflagA:")
E("  s_barrier                             ; B1")
wd_group(4)
E("  s_branch L_join_l")
E("L_idle_l:")
E("  buffer_load_dword v30, v1, s[40:43], 0 offen sc1   ; token")
for g in range(5): wd_group(g)
E("  s_cmp_lg_u32 s68, 0")
E("  s_cbranch_scc1 L_join_l")
E("  s_waitcnt vmcnt(40)")
E("  s_mov_b32 s58, 0")
E("L_tok2:")
E("  v_readfirstlane_b32 s55, v30")
E("  s_cmp_lg_u32 s55, 0")
E("  s_cbranch_scc1 L_join_l")
E("  s_sleep 2")
E("  buffer_load_dword v30, v1, s[40:43], 0 offen sc1")
E("  s_waitcnt vmcnt(0)")
E("  s_add_u32 s58, s58, 1")
E("  s_cmp_lt_u32 s58, 0x100000")
E("  s_cbranch_scc1 L_tok2")
E("L_join_l:")
def poll(tag, off, mask):
    E("  s_lshr_b32 s57, s47, 1")
    E("  s_lshl_b32 s57, s57, 8")
    E(f"  s_add_u32 s57, s57, {FLAG_OFF + off}")
    E("  v_lshlrev_b32 v8, 2, v2")
    E(f"  s_mov_b64 exec, {mask}")
    E("  s_mov_b32 s58, 0")
    E(f"L_poll{tag}:")
    E("  buffer_load_dword v9, v8, s[32:35], s57 offen sc1")
    E("  s_waitcnt vmcnt(0)")
    E("  v_cmp_ne_u32 vcc, s55, v9")
    E("  s_cmp_eq_u64 vcc, 0")
    E(f"  s_cbranch_scc1 L_pollok{tag}")
    E("  s_sleep 1")
    E("  s_add_u32 s58, s58, 1")
    E("  s_cmp_lt_u32 s58, 0x100000")
    E(f"  s_cbranch_scc1 L_poll{tag}")
    E(f"L_pollok{tag}:")
    E("  s_mov_b64 exec, -1")
E("  s_barrier                             ; Bx")
E("  s_cmp_lg_u32 s68, 0")
E("  s_cbranch_scc1 L_nopollA")
E("  s_cmp_ge_u32 s46, 14")
E("  s_cbranch_scc1 L_noflagB")
E("  s_add_u32 s56, s56, 128")
E("  s_mov_b64 exec, 1")
E("  buffer_store_dword v30, v1, s[32:35], s56 offen sc1")
E("  s_mov_b64 exec, -1")
E("L_noflagB:")
poll("A", 0, "0x7fff")
E("L_nopollA:")
E("  s_waitcnt vmcnt(8)")
E("  s_barrier                             ; B3A")
E("  s_barrier                             ; B2B")
wd_u(40, 1, 32768)
E("  s_cmp_lg_u32 s68, 0")
E("  s_cbranch_scc1 L_nopollB")
poll("B", 128, "0x3fff")
E("L_nopollB:")
E("  s_waitcnt vmcnt(0)")
E("  s_barrier                             ; B3B")
E("  s_barrier                             ; B4")
E("  s_barrier                             ; B5")
E("L_done:")
E("  s_endpgm")
IDX_LOADER_END = len(out)
out[:] = out[:IDX_ENTRY_END] + out[IDX_LOADER:IDX_LOADER_END] + out[IDX_ENTRY_END:IDX_LOADER]
E('.section .rodata,"a"')
E(".p2align 6")
E(f".amdhsa_kernel {K}")
E("  .amdhsa_next_free_vgpr 168")
E("  .amdhsa_next_free_sgpr 100")
E("  .amdhsa_accum_offset 168")
E("  .amdhsa_group_segment_fixed_size 0")
E("  .amdhsa_kernarg_size 56")
E("  .amdhsa_user_sgpr_count 2")
E("  .amdhsa_user_sgpr_kernarg_segment_ptr 1")
E("  .amdhsa_system_sgpr_workgroup_id_x 1")
E(".end_amdhsa_kernel")
path = sys.argv[1] if len(sys.argv) > 1 else "standalone__swiglu_ffn__prompt.s"
open(path, "w").write(HDR + "\n".join(out) + "\n")
```

```python
import sys, os
HDR = """; Kernarg layout for this problem (56 bytes, ptrs only, base s[0:1]):
; @launch grid=(256,1,1) block=(768,1,1) lds=163840
.amdgcn_target "amdgcn-amd-amdhsa--gfx950"
.text
"""
STAMP = int(os.environ.get("STAMP", "0"))
NEX = int(os.environ.get("NEX", "8"))
FA = int(os.environ.get("FA", "12"))
TB = int(os.environ.get("TB", "4"))
out = []
def E(s=""):
    out.append(s)
NST = [0]
def stamp(drain=False):
    if STAMP:
        n = NST[0]; NST[0] += 1
        E(f"  s_memrealtime s[{70+2*n}:{71+2*n}]")
        if n == 0:
            E("  s_memtime s[96:97]")
        if drain:
            E("  s_waitcnt lgkmcnt(0)")
def stamp_flush():
    if not STAMP: return
    n = NST[0]
    E("  s_waitcnt vmcnt(0) lgkmcnt(0)")
    E(f"  s_memrealtime s[{70+2*n}:{71+2*n}]")
    E("  s_load_dwordx2 s[60:61], s[0:1], 40")
    E("  s_waitcnt lgkmcnt(0)")
    E("  s_cmp_lg_u32 s44, 0")
    E("  s_cbranch_scc1 Lst_skip")
    E("  s_cmp_ge_u32 s46, 15")
    E("  s_cbranch_scc1 Lst_skip")
    E("  s_mov_b32 s40, s60")
    E("  s_and_b32 s41, s61, 0xffff")
    E("  s_mov_b32 s42, 256")
    E("  s_mov_b32 s43, 0x20000")
    E("  v_mov_b32 v1, 0")
    E("  s_mov_b64 exec, 1")
    sel = [0, 2, 3, 5, 6, 8, n]
    for j, i in enumerate(sel):
        E(f"  v_mov_b32 v2, s{70+2*i}")
        E(f"  s_not_b32 s58, s{70+2*i}")
        E(f"  v_mov_b32 v3, s58")
        E(f"  buffer_atomic_umax v2, v1, s[40:43], 0 offen offset:{8+8*j}")
        E(f"  buffer_atomic_umax v3, v1, s[40:43], 0 offen offset:{4+8*j}")
        E("  s_nop 1")
    E("Lst_skip:")

X_BYTES = 2048*1024
W_BYTES = 512*2752
WD_BYTES = 1376*1024
WS_BYTES = 8 << 20
FLAG_OFF = 6 << 20
OUT_BYTES = 2048*1024
OOB = 0x40000000
SLOT = 32768
def srd(d, lo, hi, nbytes):
    E(f"  s_mov_b32 s{d}, s{lo}")
    E(f"  s_and_b32 s{d+1}, s{hi}, 0xffff")
    E(f"  s_mov_b32 s{d+2}, {nbytes}")
    E(f"  s_mov_b32 s{d+3}, 0x20000")

K = "standalone__swiglu_ffn__prompt_kernel"
E(f".globl {K}")
E(".p2align 8")
E(f".type {K},@function")
E(f"{K}:")
E("  s_cmp_ge_u32 s2, 256")
E("  s_cbranch_scc1 L_done")
stamp()
E("  s_load_dwordx8 s[4:11], s[0:1], 0")
E("  s_load_dwordx4 s[12:15], s[0:1], 32")
E("  s_load_dwordx2 s[16:17], s[0:1], 48   ; ws")
E("  s_and_b32 s50, s2, 7")
E("  s_lshr_b32 s51, s2, 3                 ; idx")
E("  s_and_b32 s45, s50, 1")
E("  s_lshl_b32 s45, s45, 3")
E("  s_and_b32 s52, s51, 7")
E("  s_add_u32 s45, s45, s52               ; mt (0..15)")
E("  s_lshr_b32 s46, s50, 1")
E("  s_lshl_b32 s46, s46, 2")
E("  s_lshr_b32 s52, s51, 3")
E("  s_add_u32 s46, s46, s52               ; nt (0..15)")
E("  s_lshl_b32 s47, s50, 2")
E("  s_and_b32 s52, s51, 3")
E("  s_add_u32 s47, s47, s52               ; mt2 (0..31)")
E("  s_lshr_b32 s48, s51, 2                ; nt2 (0..7)")
E("  s_lshl_b32 s49, s48, 7                ; nt2*128")
E("  v_lshrrev_b32 v1, 6, v0")
E("  v_and_b32 v2, 63, v0                  ; lane")
E("  v_readfirstlane_b32 s44, v1")
E("  v_lshrrev_b32 v3, 3, v2               ; lane>>3")
E("  v_lshrrev_b32 v4, 4, v2               ; g = lane>>4")
E("  v_and_b32 v5, 7, v2                   ; lane&7")
E("  s_cmp_lt_u32 s44, 8")
E("  s_cbranch_scc1 L_compute")
IDX_ENTRY_END = len(out)
E("L_compute:")

E("  s_lshr_b32 s66, s44, 1")
E("  s_and_b32 s67, s44, 1")
E("  v_lshlrev_b32 v28, 4, v2              ; lane*16")
E("  v_and_b32 v30, 15, v2")
E("  v_lshlrev_b32 v30, 7, v30             ; (l&15)*128")
E("  v_bfe_u32 v31, v2, 1, 3")
E("  v_xor_b32 v31, v31, v4")
E("  v_lshl_add_u32 v30, v31, 4, v30")
E("  s_lshl_b32 s52, s44, 11")
E("  v_add_u32 v5, s52, v30")
E("  v_xor_b32 v6, 64, v5")
E("  v_xor_b32 v7, 0x800, v5")
E("  v_xor_b32 v8, 0x800, v6")
for i in range(4):
    E(f"  v_add_u32 v{9+i}, 0x10000, v{5+i}")
E("  v_bfe_u32 v30, v2, 2, 2               ; r")
E("  v_bfe_u32 v31, v2, 4, 1               ; g&1")
E("  v_lshl_add_u32 v30, v31, 2, v30")
E("  v_lshrrev_b32 v31, 5, v2")
E("  v_lshl_add_u32 v30, v31, 4, v30")
E("  v_lshlrev_b32 v30, 7, v30")
E("  v_and_b32 v31, 3, v2")
E("  v_lshl_add_u32 v30, v31, 3, v30       ; lanepart")
E("  v_bfe_u32 v31, v2, 3, 2               ; y")
for cb in range(4):
    E(f"  v_xor_b32 v25, {cb}, v31")
    E(f"  v_lshl_add_u32 v{17+cb}, v25, 5, v30")
    E(f"  v_add_u32 v{21+cb}, 0x20000, v{17+cb}")
E("  s_lshl_b32 s52, s67, 1")
E("  v_xor_b32 v25, s52, v31")
E("  v_lshl_add_u32 v13, v25, 5, v30")
E("  v_add_u32 v13, 16384, v13")
E("  v_xor_b32 v14, 32, v13                ; pa1")
E("  v_add_u32 v15, 0x10000, v13")
E("  v_add_u32 v16, 0x10000, v14")
for r in range(136, 168):
    E(f"  v_mov_b32 v{r}, 0")
E("  s_lshl_b32 s52, s45, 3                ; mt*8")
E("  s_add_u32 s53, s52, s44")
E("  s_xor_b32 s54, s53, 1")
E("  s_mul_i32 s53, s53, 43")
E("  s_mul_i32 s54, s54, 43")
E("  s_mul_i32 s52, s46, 3")
E("  s_add_u32 s53, s53, s52")
E("  s_add_u32 s54, s54, s52")
E("  s_add_u32 s55, s53, 2")
E("  s_lshl_b32 s55, s55, 10")
E("  s_add_u32 s53, s53, s67")
E("  s_lshl_b32 s53, s53, 10")
E("  s_add_u32 s54, s54, s67")
E("  s_lshl_b32 s54, s54, 10")
E("  s_mov_b32 s68, 0xbfb8aa3b             ; -log2(e)")
E("  s_mov_b32 s69, 0xbfb8aa3b")
E("  s_mov_b32 s50, 1.0")
E("  s_mov_b32 s51, 1.0")
E("  s_cmp_eq_u32 s46, 14")
E("  s_cselect_b32 s57, s67, 0")
E("  s_waitcnt lgkmcnt(0)")
srd(32, 16, 17, WS_BYTES)
srd(36, 12, 13, OUT_BYTES)
E("  s_cmp_ge_u32 s46, 15")
E("  s_cbranch_scc1 L_join")

P, Q = 32, 52
BANK = 72
ACCA = 136
ACCB = [32, 52, 8, 12]
def readsA(B, stage, ks):
    slot = stage & 3
    hi = slot >= 2
    so = (slot & 1) * SLOT
    xo = (9 if hi else 5) + ks
    pa = 15 if hi else 13
    bk = BANK + (stage*2 + ks)*4
    r_ = [f"  ds_read_b128 v[{bk}:{bk+3}], v{xo} offset:{so}",
          f"  ds_read_b128 v[{B}:{B+3}], v{xo+2} offset:{so}"]
    for gu in range(2):
        for i in range(2):
            for jj in range(2):
                r = B + 4 + gu*8 + i*4 + jj*2
                r_.append(f"  ds_read_b64_tr_b16 v[{r}:{r+1}], v{pa+i} offset:{so + jj*1024 + ks*4096 + gu*8192}")
    return r_
def mfmaA(B, stage, ks):
    m = []
    bk = BANK + (stage*2 + ks)*4
    for gu in range(2):
        for i in range(2):
            for ms in range(2):
                a = B + 4 + gu*8 + i*4
                b = bk if ms == 0 else B
                c = ACCA + gu*16 + (ms*2+i)*4
                m.append((f"  v_mfma_f32_16x16x32_bf16 v[{c}:{c+3}], v[{a}:{a+3}], v[{b}:{b+3}], v[{c}:{c+3}]", 2 + 2*(gu*2+i+1)))
    return m
def readsB(B, kk):
    stage, ks = kk >> 1, kk & 1
    pb = 21 if stage < 4 else 17
    so = (stage & 3)*8192
    r_ = []
    for cb in range(4):
        for jj in range(2):
            r = B + 4 + cb*4 + jj*2
            r_.append(f"  ds_read_b64_tr_b16 v[{r}:{r+1}], v{pb+cb} offset:{so + jj*1024 + ks*4096}")
    return r_
def mfmaB(B, kk):
    m = []
    bk = BANK + kk*4
    for cb in range(4):
        a = B + 4 + cb*4
        c = ACCB[cb]
        cin = "0" if kk == 0 else f"v[{c}:{c+3}]"
        m.append((f"  v_mfma_f32_16x16x32_bf16 v[{c}:{c+3}], v[{a}:{a+3}], v[{bk}:{bk+3}], {cin}", 2*(cb+1)))
    return m
EXTRA = []
def block(mf, nprev, rd, nextra=0):
    n = len(mf); ri = 0; last = None
    for j, (m, need) in enumerate(mf):
        allowed = min(15, nprev - need + ri)
        if allowed != last:
            E(f"  s_waitcnt lgkmcnt({allowed})")
            last = allowed
        E(m)
        tgt = -(-len(rd) * (j+1) // n)
        while ri < tgt:
            E(rd[ri]); ri += 1; last = None
        for _ in range(nextra):
            if EXTRA:
                for l in EXTRA.pop(0): E(l)
def silu_lines(g, u, d):
    L = []
    L.append(f"  v_pk_mul_f32 v[{u}:{u+1}], v[{g}:{g+1}], v[{u}:{u+1}]")
    L.append(f"  v_pk_mul_f32 v[{u+2}:{u+3}], v[{g+2}:{g+3}], v[{u+2}:{u+3}]")
    L.append(f"  v_pk_mul_f32 v[{g}:{g+1}], v[{g}:{g+1}], s[68:69]")
    L.append(f"  v_pk_mul_f32 v[{g+2}:{g+3}], v[{g+2}:{g+3}], s[68:69]")
    for e in range(4):
        L.append(f"  v_exp_f32 v{g+e}, v{g+e}")
    L.append(f"  v_pk_add_f32 v[{g}:{g+1}], v[{g}:{g+1}], s[50:51]")
    L.append(f"  v_pk_add_f32 v[{g+2}:{g+3}], v[{g+2}:{g+3}], s[50:51]")
    for e in range(4):
        L.append(f"  v_rcp_f32 v{g+e}, v{g+e}")
    L.append(f"  v_pk_mul_f32 v[{u}:{u+1}], v[{u}:{u+1}], v[{g}:{g+1}]")
    L.append(f"  v_pk_mul_f32 v[{u+2}:{u+3}], v[{u+2}:{u+3}], v[{g+2}:{g+3}]")
    L.append(f"  v_cvt_pk_bf16_f32 v{d}, v{u}, v{u+1}")
    L.append(f"  v_cvt_pk_bf16_f32 v{d+1}, v{u+2}, v{u+3}")
    return L

stamp()
E("  s_barrier")
stamp(True)
r0 = readsA(P, 0, 0)
for l in r0: E(l)
block(mfmaA(P, 0, 0), 10, readsA(Q, 0, 1))
for i in range(7):
    E("  s_barrier")
    block(mfmaA(Q, i, 1), 10, readsA(P, i+1, 0))
    block(mfmaA(P, i+1, 0), 10, readsA(Q, i+1, 1))
E("  s_barrier")
block(mfmaA(Q, 7, 1), 10, readsB(P, 0))
stamp(True)
EXTRA.append(["  s_nop 7"])
for ms in range(2):
    d = ACCA + ms*8
    for k2 in range(2):
        for l in silu_lines(ACCA + (ms*2+k2)*4, ACCA + 16 + (ms*2+k2)*4, d + 2*k2):
            EXTRA.append([l])
    EXTRA.append(["  s_cmp_eq_u32 s57, 1", f"  s_cbranch_scc1 L_nopair{ms}",
                  f"  buffer_store_dwordx4 v[{d}:{d+3}], v28, s[32:35], s{53+ms} offen sc1", f"L_nopair{ms}:"])
for kk in range(16):
    A, B = (P, Q) if kk % 2 == 0 else (Q, P)
    if kk == 2:
        E("  s_barrier")
    if kk == 7:
        E("  s_barrier")
    if kk == 9:
        E("  s_barrier")
    if kk == FA:
        E("  s_waitcnt vmcnt(0)")
        E("  s_barrier")
    block(mfmaB(A, kk), 8 if not (STAMP and kk == 0) else 8, readsB(B, kk+1) if kk < 15 else [], NEX)
assert not EXTRA
stamp()
E("  s_barrier                             ; B1: R0 free")
E("  s_nop 5")
for k2 in range(2):
    for l in silu_lines(ACCB[k2], ACCB[2+k2], ACCB[0] + 2*k2): E(l)
E("  s_cmp_eq_u32 s46, 14")
E("  s_cbranch_scc1 L_join")
E(f"  buffer_store_dwordx4 v[{ACCB[0]}:{ACCB[0]+3}], v28, s[32:35], s55 offen sc1")
E("L_join:")
stamp()
E("  s_lshl_b32 s52, s66, 12               ; kg*4096")
E("  v_lshrrev_b32 v5, 2, v2")
E("  v_lshlrev_b32 v5, 7, v5")
E("  v_and_b32 v6, 3, v2")
E("  v_lshl_add_u32 v5, v6, 3, v5")
E("  v_add_u32 v5, s52, v5")
E("  v_bfe_u32 v6, v2, 3, 2                ; y")
for cb in range(4):
    E(f"  v_xor_b32 v7, {cb}, v6")
    E(f"  v_lshl_add_u32 v{16+cb}, v7, 5, v5    ; base t=8,9 (R0)")
    E(f"  v_add_u32 v{20+cb}, 0x8000, v{16+cb}   ; t=0..3,10")
    E(f"  v_add_u32 v{24+cb}, 0x18000, v{16+cb}  ; t=4..7")
E("  v_add_u32 v29, 44032, v28")
E("  s_lshl_b32 s53, s47, 2")
E("  s_lshl_b32 s54, s67, 1")
E("  s_add_u32 s53, s53, s54")
E("  s_mul_i32 s53, s53, 44032")
for t in range(11):
    E(f"  s_add_u32 s54, s66, {4*t}")
    if t < 7:
        E("  s_lshr_b32 s55, s54, 1")
        E("  s_mul_i32 s55, s55, 3")
        E("  s_and_b32 s54, s54, 1")
        E("  s_add_u32 s55, s55, s54")
    elif t == 7:
        E("  s_mul_i32 s55, s54, 3")
        E("  s_sub_u32 s55, s55, 85")
        E("  s_cmp_eq_u32 s54, 28")
        E("  s_cselect_b32 s55, 42, s55")
    else:
        E("  s_mul_i32 s55, s54, 3")
        E("  s_sub_u32 s55, s55, 85")
    E("  s_lshl_b32 s55, s55, 10")
    E(f"  s_add_u32 s{4+t}, s55, s53")
E("  s_cmp_eq_u32 s66, 3")
E(f"  s_cselect_b32 s14, {OOB}, s14")
ACC = 64
for r in range(ACC, ACC+32):
    E(f"  v_mov_b32 v{r}, 0")
E("  s_waitcnt vmcnt(0)")
E("  s_barrier")
E("  s_barrier")
stamp(True)
WP, WQ = 32, 48
def reads2(B, t):
    r_ = []
    if t < 4: base, so = 20, t*16384
    elif t < 8: base, so = 24, (t-4)*16384
    elif t < 10: base, so = 16, (t-8)*16384
    else: base, so = 20, 0
    for cb in range(4):
        for jj in range(2):
            r = B + cb*4 + jj*2
            r_.append(f"  ds_read_b64_tr_b16 v[{r}:{r+1}], v{base+cb} offset:{so + jj*2048}")
    return r_
def hreg(t, mb): return 96 + ((t % 9)*2+mb)*4
def mfmas2(B, t):
    m = []
    for cb in range(4):
        for mb in range(2):
            c = ACC + (mb*4+cb)*4
            a = B + cb*4
            b = hreg(t, mb)
            m.append(f"  v_mfma_f32_16x16x32_bf16 v[{c}:{c+3}], v[{a}:{a+3}], v[{b}:{b+3}], v[{c}:{c+3}]")
    return m
def hload(t):
    for mb in range(2):
        r = hreg(t, mb)
        E(f"  buffer_load_dwordx4 v[{r}:{r+3}], v{28+mb}, s[32:35], s{4+t} offen sc1")
hload(0)
for l in reads2(WP, 0): E(l)
for t in range(1, 7): hload(t)
def step(t, younger, rd):
    A = WP if t % 2 == 0 else WQ
    mf = mfmas2(A, t)
    for j in range(4):
        lg = 6 if rd else 6 - 2*j
        if j == 0:
            E(f"  s_waitcnt vmcnt({younger}) lgkmcnt({lg})")
        else:
            E(f"  s_waitcnt lgkmcnt({lg})")
        for q in range(2):
            E(mf[2*j+q])
            if rd: E(rd[2*j+q])
order = list(range(7))
for t in range(10):
    B = WQ if t % 2 == 0 else WP
    if t == TB:
        stamp()
        E("  s_barrier")
        stamp(True)
        for t2 in range(7, 11): hload(t2)
        order += [7, 8, 9, 10]
    if t == 8:
        E("  s_waitcnt lgkmcnt(0)")
        E("  s_barrier")
    step(t, 2*(len(order) - 1 - order.index(t)), reads2(B, t+1))
    if t == 0:
        E("  s_barrier")
E("  s_cmp_eq_u32 s66, 3")
E("  s_cbranch_scc1 L_no10")
step(10, 0, None)
E("L_no10:")
stamp()
RED = 49152
E("  s_lshl_b32 s53, s44, 13               ; w*8192")
E(f"  s_add_u32 s53, s53, {RED}")
E("  v_add_u32 v5, s53, v28")
E("  s_lshr_b32 s54, s66, 1                ; mh'")
E("  s_lshl_b32 s54, s54, 13")
E("  s_and_b32 s55, s66, 1")
E("  s_lshl_b32 s55, s55, 12")
E("  s_add_u32 s54, s54, s55")
E("  s_lshl_b32 s55, s67, 11")
E("  s_add_u32 s54, s54, s55")
E(f"  s_add_u32 s54, s54, {RED}")
E("  v_add_u32 v6, s54, v28")
E("  s_waitcnt vmcnt(0) lgkmcnt(0)")
E("  s_nop 2")
for t in range(8):
    c = ACC + t*4
    E(f"  ds_write_b128 v5, v[{c}:{c+3}] offset:{t*1024}")
E("  s_lshl_b32 s53, s47, 6")
E("  s_lshl_b32 s54, s66, 4")
E("  s_add_u32 s53, s53, s54")
E("  v_and_b32 v8, 15, v2")
E("  v_add_u32 v8, s53, v8")
E("  v_lshlrev_b32 v8, 10, v8")
E("  s_lshl_b32 s54, s67, 6")
E("  s_add_u32 s54, s54, s49")
E("  v_add_u32 v8, s54, v8")
E("  v_and_b32 v9, 1, v4")
E("  v_lshl_add_u32 v8, v9, 5, v8")
E("  v_lshrrev_b32 v9, 1, v4")
E("  v_lshl_add_u32 v8, v9, 4, v8")
E("  s_waitcnt lgkmcnt(0)")
E("  s_barrier                             ; B5")
for kg in range(4):
    for h in range(2):
        r = 96 + (kg*2+h)*4
        E(f"  ds_read_b128 v[{r}:{r+3}], v6 offset:{kg*16384 + h*1024}")
E("  s_waitcnt lgkmcnt(0)")
for h in range(2):
    for q in range(2):
        r0 = 96 + h*4 + q*2
        E(f"  v_pk_add_f32 v[{r0}:{r0+1}], v[{r0}:{r0+1}], v[{r0+8}:{r0+9}]")
        E(f"  v_pk_add_f32 v[{r0+16}:{r0+17}], v[{r0+16}:{r0+17}], v[{r0+24}:{r0+25}]")
        E(f"  v_pk_add_f32 v[{r0}:{r0+1}], v[{r0}:{r0+1}], v[{r0+16}:{r0+17}]")
for h in range(2):
    r0 = 96 + h*4
    E(f"  v_cvt_pk_bf16_f32 v{32+2*h}, v{r0}, v{r0+1}")
    E(f"  v_cvt_pk_bf16_f32 v{33+2*h}, v{r0+2}, v{r0+3}")
E("  s_nop 1")
E("  v_permlane16_swap_b32 v32, v34")
E("  v_permlane16_swap_b32 v33, v35")
E("  buffer_store_dwordx4 v[32:35], v8, s[36:39], 0 offen")
stamp_flush()
E("  s_endpgm")

IDX_LOADER = len(out)
E("  s_sub_u32 s68, s44, 8                 ; L")
E("  s_lshl_b32 s52, s2, 2")
E("  s_add_u32 s52, s52, s68")
E("  s_mul_i32 s52, s52, 1408")
E("  v_lshlrev_b32 v9, 7, v2")
E("  v_add_u32 v9, s52, v9")
E("  v_cmp_gt_u32 vcc, 11, v2")
E("  v_mov_b32 v8, 0x40000000")
E("  s_lshl_b32 s52, s45, 7                ; mt*128")
E("  s_lshl_b32 s53, s68, 5                ; 32L")
E("  v_cndmask_b32 v9, v8, v9, vcc")
E("  s_add_u32 s52, s52, s53")
E("  v_add_u32 v6, s52, v3")
E("  v_lshlrev_b32 v6, 10, v6")
E("  v_xor_b32 v7, v5, v4")
E("  v_lshl_add_u32 v10, v7, 4, v6")
E("  v_xor_b32 v7, 4, v7")
E("  v_lshl_add_u32 v11, v7, 4, v6")
E("  v_add_u32 v12, 14336, v10")
E("  v_add_u32 v13, 21504, v11")
E("  v_add_u32 v11, 7168, v11")
E("  v_lshlrev_b32 v7, 1, v4")
E("  v_xor_b32 v14, v7, v5                 ; j (0..7)")
E("  s_mul_i32 s54, s46, 192               ; nt*192")
E("  v_and_b32 v6, 3, v3")
E("  v_and_b32 v7, 4, v3")
E("  v_lshl_add_u32 v6, v7, 1, v6")
E("  v_mul_u32_u24 v6, 2752, v6")
E("  v_add_u32 v6, s54, v6")
E("  s_and_b32 s53, s68, 1")
E(f"  s_mul_i32 s53, s53, {32*2752}")
E("  v_lshl_add_u32 v7, v14, 4, v6")
E("  v_add_u32 v7, s53, v7")
for i in range(4):
    koff = ((i & 1) << 2) | ((i >> 1) << 4)
    E(f"  v_add_u32 v{16+i}, {koff*2752 - i*1024}, v7")
E("  v_and_b32 v7, 3, v14")
E("  v_lshl_add_u32 v7, v7, 4, v6")
E(f"  s_mul_i32 s53, s68, {16*2752}")
E("  s_add_u32 s53, s53, 128")
E("  v_add_u32 v20, s53, v7")
E(f"  v_add_u32 v21, {4*2752 - 1024}, v20")
E("  v_cmp_gt_u32 s[64:65], 4, v14")
E("  s_and_b32 s55, s46, 3")
E("  s_lshl_b32 s55, s55, 1")
E("  s_and_b32 s52, s45, 7")
E("  s_add_u32 s55, s55, s52")
E("  s_sub_u32 s52, s55, 7")
E("  s_cmp_ge_u32 s55, 7")
E("  s_cselect_b32 s55, s52, s55")
E("  s_mov_b32 s3, s55")
E("  s_lshl_b32 s56, s68, 12               ; x m0 base 4096L")
E("  s_add_u32 s57, s56, 16384")
E("  s_lshl_b32 s69, s68, 11")
E("  s_not_b64 s[66:67], s[64:65]")
E("  s_waitcnt lgkmcnt(0)")
srd(20, 4, 5, X_BYTES)
E("  s_cmp_lt_u32 s68, 2")
E("  s_cselect_b32 s24, s6, s8")
E("  s_cselect_b32 s25, s7, s9")
E("  s_and_b32 s25, s25, 0xffff")
E(f"  s_mov_b32 s26, {W_BYTES}")
E("  s_mov_b32 s27, 0x20000")
srd(28, 10, 11, WD_BYTES)
E("  s_cmp_ge_u32 s46, 15")
E("  s_cbranch_scc1 L_skip_issue0")
def issueA(stage, sx, sw):
    slot = (stage & 3) * SLOT
    E(f"  s_add_u32 m0, s56, {slot}")
    E("  s_nop 0")
    for i in range(4):
        E(f"  buffer_load_dwordx4 v{10+i}, s[20:23], {sx} offen offset:{i*1024} lds")
    E(f"  s_add_u32 m0, s57, {slot}")
    E("  s_nop 0")
    for i in range(4):
        E(f"  buffer_load_dwordx4 v{16+i}, s[24:27], {sw} offen offset:{i*1024} lds")
def next_soff():
    for l in ["  s_lshl_b32 s58, s55, 7", "  s_add_u32 s58, s58, 128", "  s_mul_i32 s59, s55, 176128",
              "  s_add_u32 s59, s59, 176128", "  s_add_u32 s55, s55, 1", "  s_cmp_eq_u32 s55, 7",
              "  s_cselect_b32 s55, 0, s55"]: E(l)
def issueB(stage):
    lds = (131072 if stage < 4 else 0) + (stage & 3)*8192
    if stage == 0:
        E("  s_mov_b32 s59, 0")
    else:
        for l in ["  s_mul_i32 s59, s3, 176128", "  s_add_u32 s59, s59, 176128", "  s_add_u32 s3, s3, 1",
                  "  s_cmp_eq_u32 s3, 7", "  s_cselect_b32 s3, 0, s3"]: E(l)
    E(f"  s_add_u32 m0, s69, {lds}")
    E("  s_mov_b64 exec, s[64:65]")
    for i in range(2):
        E(f"  buffer_load_dwordx4 v{20+i}, s[36:39], s59 offen offset:{i*1024} lds")
    E("  s_mov_b64 exec, s[66:67]")
    for i in range(2):
        E(f"  buffer_load_dwordx4 v{20+i}, s[60:63], s59 offen offset:{i*1024} lds")
    E("  s_mov_b64 exec, -1")
issueA(0, "0", "0")
for st in (1, 2):
    next_soff()
    issueA(st, "s58", "s59")
E("L_skip_issue0:")
E("  buffer_load_dword v31, v9, s[28:31], 0 offen")
srd(32, 16, 17, WS_BYTES)
srd(40, 14, 15, 256)
srd(36, 6, 7, W_BYTES)
srd(60, 8, 9, W_BYTES)
E("  s_add_u32 s52, s68, s2")
E("  v_mov_b32 v1, 0")
E("  s_cmp_lg_u32 s52, 0")
E("  s_cbranch_scc1 L_notok")
E("  s_memrealtime s[52:53]")
E("  s_waitcnt lgkmcnt(0)")
E("  s_or_b32 s52, s52, 1")
E("  v_mov_b32 v8, s52")
E("  s_mov_b64 exec, 1")
E("  buffer_store_dword v8, v1, s[40:43], 0 offen sc1")
E("  s_mov_b64 exec, -1")
E("L_notok:")
E("  v_lshlrev_b32 v6, 10, v3")
E("  v_lshl_add_u32 v6, v14, 4, v6")
E("  v_add_u32 v15, s49, v6")
def wd_u(ubase, mul, ldsbase):
    E(f"  s_mul_i32 s52, s68, {mul}")
    E(f"  s_lshl_b32 s53, s52, 12")
    E(f"  s_add_u32 s53, s53, {ldsbase}")
    E(f"  s_add_u32 s52, s52, {ubase}           ; u")
    E("  s_lshr_b32 s54, s52, 1")
    E("  s_mul_i32 s54, s54, 3")
    E("  s_and_b32 s58, s52, 1")
    E("  s_add_u32 s54, s54, s58")
    E("  s_mul_i32 s58, s52, 3")
    E("  s_sub_u32 s58, s58, 85")
    E("  s_cmp_le_u32 s52, 28")
    E("  s_cselect_b32 s54, s54, s58")
    E("  s_lshl_b32 s54, s54, 15")
    E("  s_mov_b32 m0, s53")
    for e in range(4):
        E(f"  s_add_u32 s58, s54, {e*7168}")
        E(f"  buffer_load_dwordx4 v15, s[28:31], s58 offen offset:{e*1024} lds")
def wd_group(g):
    for h in range(2):
        if g < 4: wd_u(8*g + h, 2, 32768 + (8*g + h)*4096)
        else: wd_u(32 + h, 2, h*4096)
E("  s_cmp_ge_u32 s46, 15")
E("  s_cbranch_scc1 L_idle_l")
E("  s_waitcnt vmcnt(17)")
E("  s_barrier                             ; B0")
cnt = {0: 9, 1: 9, 2: 8, 3: 8, 4: 8, 5: 8, 6: 16}
for i in range(7):
    E(f"  s_waitcnt vmcnt({cnt[i]})")
    E("  s_barrier")
    if i <= 4:
        next_soff()
        issueA(i+3, "s58", "s59")
    if i == 5:
        for s_ in range(0, 4): issueB(s_)
    if i == 6:
        for s_ in range(4, 8): issueB(s_)
E("  s_waitcnt vmcnt(16)")
E("  s_barrier")
wd_group(0)
wd_group(1)
E("  buffer_load_dword v30, v1, s[40:43], 0 offen sc1   ; token")
E("  s_barrier                             ; Bq")
wd_group(2)
E("  s_waitcnt vmcnt(25)")
E("  s_barrier                             ; Bw")
E("  s_barrier                             ; Bm")
wd_group(3)
E("  s_cmp_lg_u32 s68, 0")
E("  s_cbranch_scc1 L_tokdone")
E("  s_waitcnt vmcnt(16)                   ; token")
E("  s_mov_b32 s58, 0")
E("L_tok:")
E("  v_readfirstlane_b32 s55, v30")
E("  s_cmp_lg_u32 s55, 0")
E("  s_cbranch_scc1 L_tokdone")
E("  s_sleep 2")
E("  buffer_load_dword v30, v1, s[40:43], 0 offen sc1")
E("  s_waitcnt vmcnt(0)")
E("  s_add_u32 s58, s58, 1")
E("  s_cmp_lt_u32 s58, 0x100000")
E("  s_cbranch_scc1 L_tok")
E("L_tokdone:")
E("  s_lshl_b32 s56, s45, 8")
E("  s_lshl_b32 s57, s46, 2")
E("  s_add_u32 s56, s56, s57")
E(f"  s_add_u32 s56, s56, {FLAG_OFF}")
E("  s_barrier                             ; Bfa")
E("  s_cmp_lg_u32 s68, 0")
E("  s_cbranch_scc1 L_noflagA")
E("  s_mov_b64 exec, 1")
E("  buffer_store_dword v30, v1, s[32:35], s56 offen sc1")
E("  s_mov_b64 exec, -1")
E("L_noflagA:")
E("  s_barrier                             ; B1")
wd_group(4)
E("  s_branch L_join_l")
E("L_idle_l:")
E("  buffer_load_dword v30, v1, s[40:43], 0 offen sc1   ; token")
for g in range(5): wd_group(g)
E("  s_cmp_lg_u32 s68, 0")
E("  s_cbranch_scc1 L_join_l")
E("  s_waitcnt vmcnt(40)")
E("  s_mov_b32 s58, 0")
E("L_tok2:")
E("  v_readfirstlane_b32 s55, v30")
E("  s_cmp_lg_u32 s55, 0")
E("  s_cbranch_scc1 L_join_l")
E("  s_sleep 2")
E("  buffer_load_dword v30, v1, s[40:43], 0 offen sc1")
E("  s_waitcnt vmcnt(0)")
E("  s_add_u32 s58, s58, 1")
E("  s_cmp_lt_u32 s58, 0x100000")
E("  s_cbranch_scc1 L_tok2")
E("L_join_l:")
def poll(tag, off, mask):
    E("  s_lshr_b32 s57, s47, 1")
    E("  s_lshl_b32 s57, s57, 8")
    E(f"  s_add_u32 s57, s57, {FLAG_OFF + off}")
    E("  v_lshlrev_b32 v8, 2, v2")
    E(f"  s_mov_b64 exec, {mask}")
    E("  s_mov_b32 s58, 0")
    E(f"L_poll{tag}:")
    E("  buffer_load_dword v9, v8, s[32:35], s57 offen sc1")
    E("  s_waitcnt vmcnt(0)")
    E("  v_cmp_ne_u32 vcc, s55, v9")
    E("  s_cmp_eq_u64 vcc, 0")
    E(f"  s_cbranch_scc1 L_pollok{tag}")
    E("  s_sleep 1")
    E("  s_add_u32 s58, s58, 1")
    E("  s_cmp_lt_u32 s58, 0x100000")
    E(f"  s_cbranch_scc1 L_poll{tag}")
    E(f"L_pollok{tag}:")
    E("  s_mov_b64 exec, -1")
E("  s_barrier                             ; Bx")
E("  s_cmp_lg_u32 s68, 0")
E("  s_cbranch_scc1 L_nopollA")
E("  s_cmp_ge_u32 s46, 14")
E("  s_cbranch_scc1 L_noflagB")
E("  s_add_u32 s56, s56, 128")
E("  s_mov_b64 exec, 1")
E("  buffer_store_dword v30, v1, s[32:35], s56 offen sc1")
E("  s_mov_b64 exec, -1")
E("L_noflagB:")
poll("A", 0, "0x7fff")
E("L_nopollA:")
E("  s_waitcnt vmcnt(8)")
E("  s_barrier                             ; B3A")
E("  s_barrier                             ; B2B")
wd_u(40, 1, 32768)
E("  s_cmp_lg_u32 s68, 0")
E("  s_cbranch_scc1 L_nopollB")
poll("B", 128, "0x3fff")
E("L_nopollB:")
E("  s_waitcnt vmcnt(0)")
E("  s_barrier                             ; B3B")
E("  s_barrier                             ; B4")
E("  s_barrier                             ; B5")
E("L_done:")
E("  s_endpgm")
IDX_LOADER_END = len(out)
out[:] = out[:IDX_ENTRY_END] + out[IDX_LOADER:IDX_LOADER_END] + out[IDX_ENTRY_END:IDX_LOADER]
E('.section .rodata,"a"')
E(".p2align 6")
E(f".amdhsa_kernel {K}")
E("  .amdhsa_next_free_vgpr 168")
E("  .amdhsa_next_free_sgpr 100")
E("  .amdhsa_accum_offset 168")
E("  .amdhsa_group_segment_fixed_size 0")
E("  .amdhsa_kernarg_size 56")
E("  .amdhsa_user_sgpr_count 2")
E("  .amdhsa_user_sgpr_kernarg_segment_ptr 1")
E("  .amdhsa_system_sgpr_workgroup_id_x 1")
E(".end_amdhsa_kernel")
path = sys.argv[1] if len(sys.argv) > 1 else "standalone__swiglu_ffn__prompt.s"
open(path, "w").write(HDR + "\n".join(out) + "\n")
```
